```python
import torch

def _softmax(x, axis=-1):
    return torch.softmax(x, dim=axis)
def _gelu(x):
    return torch.nn.functional.gelu(x, approximate="tanh")
def _silu(x):
    return torch.nn.functional.silu(x)
def _sigmoid(x):
    return torch.sigmoid(x)
def _layernorm(x, axis=-1, eps=1e-5):
    m = x.mean(dim=axis, keepdim=True)
    v = x.var(dim=axis, keepdim=True, unbiased=False)
    return (x - m) / torch.sqrt(v + eps)
def _scatter_add(tgt, idx, src, axis=0):
    return tgt.clone().index_add_(axis, idx, src)
def _segment_sum(src, seg, n):
    out = torch.zeros((n,) + src.shape[1:], dtype=src.dtype)
    return out.index_add_(0, seg, src)
def _pad(x, pw):
    flat = tuple(v for pair in reversed(pw) for v in pair)
    return torch.nn.functional.pad(x, flat)

kernel_name = 'sequential_preLN__ssm_conv_s4d__glu_gated_glu__prompt'

def setup_inputs():

    _w = (lambda a: (lambda t: t.to(torch.bfloat16) if t.is_floating_point() else t)(torch.as_tensor(a)))
    def _A_setup():
        Bsz, L, D, N = 1, 2048, 512, 128
        return {
            "u": _w((lambda *s: torch.randn(*s, dtype=torch.bfloat16) * 0.05)(Bsz, L, D)),
            "log_A_real": _w((lambda *s: torch.randn(*s, dtype=torch.bfloat16) * 6.4)(D, N) * 0.5),
            "A_imag": _w((lambda *s: torch.randn(*s, dtype=torch.bfloat16) * 0.05)(D, N) * 3.14),
            "C_real": _w((lambda *s: torch.randn(*s, dtype=torch.bfloat16) * 0.05)(D, N) / N ** 0.5),
            "C_imag": _w((lambda *s: torch.randn(*s, dtype=torch.bfloat16) * 0.05)(D, N) / N ** 0.5),
            "log_dt": _w((lambda *s: torch.randn(*s, dtype=torch.bfloat16) * 0.05)(D) * 0.5 - 4.0),
            "D_skip": _w((lambda *s: torch.randn(*s, dtype=torch.bfloat16) * 0.05)(D)),
        }
    _A_in = _A_setup()

    def _B_setup():
        B, S, D, F = 1, 2048, 512, 1376
        return {
            "x": _w((lambda *s: torch.randn(*s, dtype=torch.bfloat16) * 0.05)(B, S, D)),
            "w_gate": _w((lambda *s: torch.randn(*s, dtype=torch.bfloat16) * 0.05)(D, F)),
            "w_up": _w((lambda *s: torch.randn(*s, dtype=torch.bfloat16) * 0.05)(D, F)),
            "w_down": _w((lambda *s: torch.randn(*s, dtype=torch.bfloat16) * 0.05)(F, D)),
        }
    _B_in = _B_setup()

    return {
        "A_u": _A_in["u"],
        "A_log_A_real": _A_in["log_A_real"],
        "A_A_imag": _A_in["A_imag"],
        "A_C_real": _A_in["C_real"],
        "A_C_imag": _A_in["C_imag"],
        "A_log_dt": _A_in["log_dt"],
        "A_D_skip": _A_in["D_skip"],
        "B_x": _B_in["x"],
        "B_w_gate": _B_in["w_gate"],
        "B_w_up": _B_in["w_up"],
        "B_w_down": _B_in["w_down"],
    }

def reference(A_u, A_log_A_real, A_A_imag, A_C_real, A_C_imag, A_log_dt, A_D_skip, B_x, B_w_gate, B_w_up, B_w_down):
    def _A_ref(u, log_A_real, A_imag, C_real, C_imag, log_dt, D_skip):
        L = u.shape[1]
        dt = torch.exp(log_dt)
        A = -torch.exp(log_A_real) + 1j * A_imag
        C = (C_real + 1j * C_imag) * dt[:, None]
        pos = (lambda x, dt: x.to(dt))(torch.arange(L), log_dt.dtype)
        P = torch.exp((A * dt[:, None])[:, :, None] * pos[None, None, :])
        K = 2.0 * torch.einsum("dn,dnl->dl", C, P).real
        L2 = 2 * L
        u_t = (lambda x, *d: x.permute(*d))(u, 0, 2, 1)
        Kf = (lambda x, *a, **k: torch.fft.rfft(x.float(), *a, **k))(K, L2)
        Uf = (lambda x, *a, **k: torch.fft.rfft(x.float(), *a, **k))(u_t, L2)
        y = (lambda x, *a, **k: torch.fft.irfft(x, *a, **k).to(torch.bfloat16))(Uf * Kf[None, :, :], L2)[:, :, :L]
        y = (lambda x, *d: x.permute(*d))(y, 0, 2, 1)
        return y + u * D_skip[None, None, :]

    def _B_ref(x, w_gate, w_up, w_down):
        g = torch.einsum("bsd,df->bsf", x, w_gate)
        u = torch.einsum("bsd,df->bsf", x, w_up)
        h = _sigmoid(g) * u
        return torch.einsum("bsf,fd->bsd", h, w_down)

    x = A_u
    h = x + _A_ref(_layernorm(x, axis=-1), A_log_A_real, A_A_imag, A_C_real, A_C_imag, A_log_dt, A_D_skip)
    h2 = h + _B_ref(_layernorm(h, axis=-1), B_w_gate, B_w_up, B_w_down)
    return h2
```

```python
import re

REG = re.compile(r'^(-|abs\(|\|)?([vas])(\d+|\[(\d+):(\d+)\])\)?\|?$')
TRANS = ('v_exp_f32', 'v_log_f32', 'v_rcp_f32', 'v_rsq_f32', 'v_sqrt_f32', 'v_sin_f32', 'v_cos_f32', 'v_rcp_iflag_f32')


def regs_of(tok):
    tok = tok.strip()
    if tok in ('vcc',):
        return {('s', 106), ('s', 107)}
    if tok == 'vcc_lo':
        return {('s', 106)}
    if tok == 'vcc_hi':
        return {('s', 107)}
    if tok == 'exec':
        return {('s', 126), ('s', 127)}
    if tok == 'exec_lo':
        return {('s', 126)}
    if tok == 'exec_hi':
        return {('s', 127)}
    if tok == 'm0':
        return {('s', 124)}
    m = REG.match(tok)
    if not m:
        return set()
    kind = m.group(2)
    if m.group(4) is not None:
        return {(kind, i) for i in range(int(m.group(4)), int(m.group(5)) + 1)}
    return {(kind, int(m.group(3)))}


def split_ops(s):
    out, depth, cur = [], 0, ''
    for ch in s:
        if ch in '[(':
            depth += 1
        if ch in '])':
            depth -= 1
        if ch == ',' and depth == 0:
            out.append(cur.strip())
            cur = ''
        else:
            cur += ch
    if cur.strip():
        out.append(cur.strip())
    return out


class Ins:
    def __init__(self, text):
        self.text = text
        t = text.split(';')[0].strip()
        self.label = None
        self.op = None
        if t.endswith(':'):
            self.label = t[:-1]
            return
        if not t or t.startswith('.'):
            return
        parts = t.split(None, 1)
        self.op = op = parts[0]
        rest = parts[1] if len(parts) > 1 else ''
        ops = split_ops(rest)
        mods = ''
        if ops:
            last = ops[-1].split(None, 1)
            ops[-1] = last[0]
            mods = last[1] if len(last) > 1 else ''
        self.ops, self.mods = ops, mods
        self.base = re.sub(r'_(e32|e64|dpp|sdwa)$', '', op)
        R = [regs_of(o) for o in ops]
        self.mfma = op.startswith('v_mfma')
        self.valu = op.startswith('v_') and not self.mfma
        self.trans = self.base in TRANS
        self.dot = op.startswith('v_dot')
        self.dpp = op.endswith('_dpp') or 'quad_perm' in mods or 'row_' in mods or 'wave_' in mods
        self.perml = op.startswith('v_permlane')
        self.rdlane = op.startswith('v_readlane') or op.startswith('v_readfirstlane')
        self.ds = op.startswith('ds_')
        self.vmem = op.startswith('buffer_') or op.startswith('global_') or op.startswith('flat_')
        self.salu = op.startswith('s_')
        self.lds_dma = self.vmem and (' lds' in ' ' + mods or 'load_lds' in op)
        self.wide_store = self.vmem and 'store' in op and (op.endswith('x4') or op.endswith('x3'))
        self.passes = 0
        self.store_data = set()
        w, r = set(), set()
        if self.mfma:
            w = R[0]
            self.A, self.B, self.C = R[1], R[2], R[3]
            r = R[1] | R[2] | R[3]
            self.passes = 8 if '32x32' in op else (4 if '16x16' in op else 2)
        elif self.valu:
            w = set(R[0])
            srcs = R[1:]
            if '_co_' in op and not op.startswith('v_cmp'):
                w |= R[1]
                srcs = R[2:]
            for x in srcs:
                r |= x
            if self.perml or op.startswith('v_swap'):
                w |= R[1]
                r |= R[0]
            if self.base in ('v_fmac_f32', 'v_dot2c_f32_bf16', 'v_writelane_b32') or self.dpp or 'UNUSED_PRESERVE' in mods:
                r |= R[0]
            if op.startswith('v_cmpx'):
                w |= regs_of('exec')
            if self.base == 'v_cndmask_b32' and len(ops) == 3:
                r |= regs_of('vcc')
        elif self.ds:
            if op.startswith('ds_read') or op.startswith('ds_bpermute') or op.startswith('ds_permute') or op.startswith('ds_swizzle') or '_rtn' in op:
                w = R[0]
                for x in R[1:]:
                    r |= x
            else:
                for x in R:
                    r |= x
        elif self.vmem:
            if op in ('buffer_wbl2', 'buffer_inv'):
                pass
            elif self.lds_dma:
                for x in R:
                    r |= x
                r |= regs_of('m0')
            elif 'load' in op:
                w = R[0]
                for x in R[1:]:
                    r |= x
            elif 'store' in op:
                for x in R:
                    r |= x
                self.store_data = R[0] if op.startswith('buffer') else R[1]
            elif 'atomic' in op:
                for x in R:
                    r |= x
                if 'sc0' in mods:
                    w = R[0]
        elif self.salu:
            nodst = op.startswith(('s_cmp', 's_cbranch', 's_branch', 's_waitcnt', 's_nop', 's_barrier', 's_endpgm',
                                   's_sleep', 's_setprio', 's_bitcmp', 's_setreg', 's_setpc'))
            if nodst:
                for x in R:
                    r |= x
            else:
                w = set(R[0])
                for x in R[1:]:
                    r |= x
                if 'saveexec' in op:
                    w |= regs_of('exec')
        self.w, self.r = w, r
        self.slots = 1
        if op == 's_nop':
            self.slots = int(ops[0], 0) + 1


def vec(x):
    return {q for q in x if q[0] in 'va'}


def sca(x):
    return {q for q in x if q[0] == 's'}


EXEC = regs_of('exec')
M0 = regs_of('m0')


def need(p, c):
    n = 0
    if p.mfma:
        D = p.w
        ps = p.passes
        if c.mfma:
            if D & (c.A | c.B):
                n = max(n, {2: 5, 4: 8, 8: 12}[ps])
            if D & c.C:
                if c.C == D and c.passes == ps:
                    n = max(n, 2 if ps == 2 else 0)
                else:
                    n = max(n, {2: 4, 4: 6, 8: 10}[ps])
            elif D & c.w:
                n = max(n, {2: 5, 4: 8, 8: 12}[ps])
        elif c.valu or c.vmem or c.ds:
            if D & (c.r | c.w):
                n = max(n, {2: 5, 4: 8, 8: 12}[ps])
            if c.valu and (p.C & c.w):
                n = max(n, {2: 1, 4: 3, 8: 7}[ps])
            if (c.vmem or c.ds) and (p.C & c.w):
                n = max(n, {2: 1, 4: 3, 8: 7}[ps])
    if p.valu:
        vw, sw = vec(p.w), sca(p.w)
        if c.mfma and vw & c.r:
            n = max(n, 3 if p.dot else 2)
        if c.valu:
            if c.dpp and vw & c.r:
                n = max(n, 2)
            if c.perml and vw & c.r:
                n = max(n, 2)
            if c.rdlane and vw & c.r:
                n = max(n, 1)
            if p.trans and not c.trans and vw & c.r:
                n = max(n, 1)
            if p.trans and c.trans and vw & c.r:
                n = max(n, 1)
            if sw & c.r:
                n = max(n, 4 if (c.rdlane or c.op.startswith('v_writelane')) else 2)
            if p.dot and vw & (c.r | c.w):
                if c.base == p.base:
                    srcab = set()
                    for o in c.ops[1:3]:
                        srcab |= regs_of(o)
                    if vw & srcab:
                        n = max(n, 3)
                else:
                    n = max(n, 3)
            if ('dst_sel:WORD' in p.mods or 'dst_sel:BYTE' in p.mods) and vw & (c.r | c.w):
                n = max(n, 1)
            if sw & EXEC and (c.dpp):
                n = max(n, 5)
            if sw & EXEC and (c.rdlane or c.perml):
                n = max(n, 4)
        if p.dot and (c.vmem or c.ds) and vw & (c.r | c.w):
            n = max(n, 3)
        if p.trans and (c.vmem or c.ds) and vw & c.r:
            n = max(n, 1)
        if c.mfma and sw & EXEC:
            n = max(n, 4)
        if c.vmem and sw & c.r:
            n = max(n, 5)
        if c.salu and sw & c.r:
            n = max(n, 1)
    if p.salu and (p.w & M0) and (c.lds_dma or 'addtid' in c.op):
        n = max(n, 1)
    if p.wide_store and p.store_data & c.w:
        n = max(n, 2)
    return n


class Asm:
    def __init__(self):
        self.lines = []

    def __call__(self, s):
        for l in s.split('\n'):
            l = l.strip()
            if l:
                self.lines.append(l)

    def fix(self, verbose=False):
        added = 0
        ins = [Ins(l) for l in self.lines]
        changed = True
        while changed:
            changed = False
            i = 0
            while i < len(ins):
                c = ins[i]
                if not c.op or c.op in ('s_nop', 's_waitcnt', 's_barrier'):
                    i += 1
                    continue
                short = 0
                stack = [(i, 0)]
                seen = set()
                while stack:
                    j, dist = stack.pop()
                    ps = []
                    if ins[j].label:
                        ps = [k for k, x in enumerate(ins)
                              if x.op and (x.op.startswith('s_cbranch') or x.op == 's_branch') and x.ops[0] == ins[j].label]
                    if j > 0 and not (ins[j - 1].op in ('s_branch', 's_endpgm')):
                        ps.append(j - 1)
                    for k in ps:
                        p = ins[k]
                        if not p.op:
                            if (k, dist) not in seen:
                                seen.add((k, dist))
                                stack.append((k, dist))
                            continue
                        nd = need(p, c)
                        if nd > dist:
                            short = max(short, nd - dist)
                        d2 = dist + p.slots
                        if d2 < 12 and (k, d2) not in seen:
                            seen.add((k, d2))
                            stack.append((k, d2))
                if short:
                    if verbose:
                        print('nop', short, 'before', c.text)
                    ins.insert(i, Ins(f's_nop {short - 1}'))
                    added += 1
                    changed = True
                    i += 1
                i += 1
        self.lines = [x.text for x in ins]
        return added

    def text(self):
        out = []
        for l in self.lines:
            if l.endswith(':') or l.startswith('.') or l.startswith(';'):
                out.append(l)
            else:
                out.append('    ' + l)
        return '\n'.join(out) + '\n'


def v(a, n=1):
    return f'v{a}' if n == 1 else f'v[{a}:{a + n - 1}]'


def a(x, n=1):
    return f'a{x}' if n == 1 else f'a[{x}:{x + n - 1}]'


def s(x, n=1):
    return f's{x}' if n == 1 else f's[{x}:{x + n - 1}]'


def kernel_text(name, body, vgpr, sgpr=96, accum=None):
    accum = accum if accum is not None else (min(vgpr, 256) + 3) // 4 * 4
    head = f'.text\n.globl {name}\n.p2align 8\n.type {name},@function\n{name}:\n'
    kd = f'''.section .rodata,"a"
.p2align 6
.amdhsa_kernel {name}
  .amdhsa_next_free_vgpr {vgpr}
  .amdhsa_next_free_sgpr {sgpr}
  .amdhsa_accum_offset {accum}
  .amdhsa_group_segment_fixed_size 0
  .amdhsa_kernarg_size 112
  .amdhsa_user_sgpr_count 2
  .amdhsa_user_sgpr_kernarg_segment_ptr 1
  .amdhsa_system_sgpr_workgroup_id_x 1
.end_amdhsa_kernel
'''
    return head + body + kd
```

```python
import sys
from asmlib import *

NAME = 'sequential_preLN__ssm_conv_s4d__glu_gated_glu__prompt'
HEADER = open('cdna_kernels/' + NAME + '.s.ref').read().split('; Override')[0]

A_U, A_LAR, A_AIM, A_CR, A_CI, A_LDT, A_DSK, B_X, W_G, W_U, W_D, D_OUT, D_DBG, D_WS = [8 * i for i in range(14)]
WS_STAT = 0
WS_SFR = 0x4000
WS_HT = 0x100000
WS_H = 0x400000
H_BYTES = 64 * 86 * 1024
LOG2E = 0x3fb8aa3b
INV2PI = 0x3e22f983


def srd(k, d, b, nbytes, off=0):
    if off:
        k(f's_add_u32 s{d}, s{b}, {hex(off)}')
        k(f's_addc_u32 s{d + 1}, s{b + 1}, 0')
    else:
        k(f's_mov_b32 s{d}, s{b}')
        k(f's_mov_b32 s{d + 1}, s{b + 1}')
    k(f's_mov_b32 s{d + 2}, {hex(nbytes)}')
    k(f's_mov_b32 s{d + 3}, 0x20000')


def allreduce(k, regs, tmp, first=0):
    steps = ['quad_perm:[1,0,3,2]', 'quad_perm:[2,3,0,1]', 'row_half_mirror', 'row_mirror']
    if first == 1:
        steps = ['quad_perm:[2,3,0,1]', 'row_ror:4', 'row_ror:8']
    for st in steps:
        for r in regs:
            k(f'v_add_f32_dpp v{r}, v{r}, v{r} {st} row_mask:0xf bank_mask:0xf')
    for op in ('v_permlane16_swap_b32', 'v_permlane32_swap_b32'):
        for i, r in enumerate(regs):
            k(f'v_mov_b32 v{tmp + i}, v{r}')
        for i, r in enumerate(regs):
            k(f'{op} v{r}, v{tmp + i}')
        for i, r in enumerate(regs):
            k(f'v_add_f32 v{r}, v{r}, v{tmp + i}')


def bf16round(k, d, srcreg):
    k(f'v_cvt_pk_bf16_f32 v{d}, {srcreg}, {srcreg}')
    k(f'v_and_b32 v{d}, 0xffff0000, v{d}')


def kern_a():
    k = Asm()
    k('s_cmp_ge_u32 s2, 256')
    k('s_cbranch_scc1 A_end')
    k(f's_load_dwordx2 s[4:5], s[0:1], {A_U}')
    k(f's_load_dwordx4 s[8:11], s[0:1], {W_G}')
    k(f's_load_dwordx2 s[6:7], s[0:1], {D_WS}')
    k('v_lshrrev_b32 v1, 6, v0')
    k('v_and_b32 v2, 63, v0')
    k('v_lshlrev_b32 v3, 4, v2')
    k('v_lshl_add_u32 v3, v1, 11, v3')
    k('s_lshl_b32 s3, s2, 13')
    k('v_lshrrev_b32 v40, 1, v0')
    k('v_mul_u32_u24 v40, 2752, v40')
    k('v_and_b32 v41, 1, v0')
    k('v_lshl_add_u32 v40, v41, 4, v40')
    k('s_waitcnt lgkmcnt(0)')
    srd(k, 12, 4, 2048 * 1024)
    srd(k, 16, 6, 0x8000)
    k('s_cmp_ge_u32 s2, 86')
    k('s_cselect_b32 s20, s10, s8')
    k('s_cselect_b32 s21, s11, s9')
    k('s_cselect_b32 s24, 86, 0')
    k('s_cselect_b32 s25, 64, 0')
    k(f's_mov_b32 s22, {512 * 2752}')
    k('s_mov_b32 s23, 0x20000')
    k('s_sub_u32 s24, s2, s24')
    k('buffer_load_dwordx4 v[4:7], v3, s[12:15], s3 offen')
    k('buffer_load_dwordx4 v[8:11], v3, s[12:15], s3 offen offset:1024')
    k('s_cmp_ge_u32 s2, 172')
    k('s_cbranch_scc1 A_nocs0')
    k('s_lshl_b32 s26, s24, 5')
    for i in range(4):
        k(f'buffer_load_dwordx4 v[{44 + 4 * i}:{47 + 4 * i}], v40, s[20:23], s26 offen')
        if i < 3:
            k(f's_add_u32 s26, s26, {128 * 2752}')
    k('s_waitcnt vmcnt(4)')
    k('s_branch A_go')
    k('A_nocs0:')
    k('s_waitcnt vmcnt(0)')
    k('A_go:')
    for r in range(2):
        for i in range(4):
            k(f'v_lshlrev_b32 v{12 + 8 * r + 2 * i}, 16, v{4 + 4 * r + i}')
            k(f'v_and_b32 v{13 + 8 * r + 2 * i}, 0xffff0000, v{4 + 4 * r + i}')
    for r in range(2):
        b = 12 + 8 * r
        k(f'v_add_f32 v{28 + r}, v{b}, v{b + 1}')
        for i in range(2, 8):
            k(f'v_add_f32 v{28 + r}, v{28 + r}, v{b + i}')
    allreduce(k, [28, 29], 32)
    for r in range(2):
        k(f'v_mul_f32 v{28 + r}, 0x3b000000, v{28 + r}')
    for r in range(2):
        b = 12 + 8 * r
        for i in range(8):
            k(f'v_sub_f32 v{b + i}, v{b + i}, v{28 + r}')
        k(f'v_mul_f32 v{30 + r}, v{b}, v{b}')
        for i in range(1, 8):
            k(f'v_fmac_f32 v{30 + r}, v{b + i}, v{b + i}')
    allreduce(k, [30, 31], 32)
    for r in range(2):
        k(f'v_mul_f32 v{30 + r}, 0x3b000000, v{30 + r}')
        bf16round(k, 30 + r, f'v{30 + r}')
        k(f'v_add_f32 v{30 + r}, 0x3727c5ac, v{30 + r}')
        bf16round(k, 30 + r, f'v{30 + r}')
        k(f'v_sqrt_f32 v{30 + r}, v{30 + r}')
        k(f'v_cvt_pk_bf16_f32 v{34 + r}, v{28 + r}, v{30 + r}')
    k('v_lshlrev_b32 v3, 3, v1')
    k('s_lshl_b32 s3, s2, 5')
    k('s_mov_b64 exec, 1')
    k('buffer_store_dwordx2 v[34:35], v3, s[16:19], s3 offen')
    k('s_mov_b64 exec, -1')
    k('s_cmp_ge_u32 s2, 172')
    k('s_cbranch_scc1 A_end')
    k('s_waitcnt vmcnt(1)')
    for i in range(4):
        for j in range(4):
            src = 44 + 4 * i + j
            if i == 0:
                k(f'v_lshlrev_b32 v{12 + 2 * j}, 16, v{src}')
                k(f'v_and_b32 v{13 + 2 * j}, 0xffff0000, v{src}')
            else:
                k(f'v_lshlrev_b32 v20, 16, v{src}')
                k(f'v_and_b32 v21, 0xffff0000, v{src}')
                k(f'v_pk_add_f32 v[{12 + 2 * j}:{13 + 2 * j}], v[{12 + 2 * j}:{13 + 2 * j}], v[20:21]')
    allreduce(k, list(range(12, 20)), 20, first=1)
    k('v_lshlrev_b32 v3, 6, v1')
    k('v_lshl_add_u32 v3, v41, 5, v3')
    k('s_mov_b64 exec, 3')
    k('ds_write_b128 v3, v[12:15]')
    k('ds_write_b128 v3, v[16:19] offset:16')
    k('s_mov_b64 exec, -1')
    k('s_waitcnt lgkmcnt(0)')
    k('s_barrier')
    k('v_and_b32 v3, 15, v0')
    k('v_lshlrev_b32 v4, 2, v3')
    k('ds_read2_b32 v[12:13], v4 offset0:0 offset1:16')
    k('ds_read2_b32 v[14:15], v4 offset0:32 offset1:48')
    k('v_lshrrev_b32 v5, 2, v3')
    k('v_lshlrev_b32 v6, 1, v5')
    k('v_lshrrev_b32 v5, 1, v5')
    k('v_or_b32 v5, v5, v6')
    k('v_and_b32 v5, 3, v5')
    k('v_and_b32 v6, 3, v3')
    k('v_lshl_add_u32 v5, v5, 2, v6')
    k('v_lshlrev_b32 v5, 2, v5')
    k('s_lshl_b32 s26, s24, 7')
    k('s_add_u32 s26, s26, s25')
    k(f's_add_u32 s26, s26, {WS_SFR}')
    k('s_waitcnt lgkmcnt(0)')
    k('v_add_f32 v12, v12, v13')
    k('v_add_f32 v14, v14, v15')
    k('v_add_f32 v12, v12, v14')
    bf16round(k, 13, 'v12')
    k('v_sub_f32 v14, v12, v13')
    k('v_cvt_pk_bf16_f32 v12, v13, v14')
    k('v_cmp_gt_u32 vcc, 16, v0')
    k('s_and_saveexec_b64 s[28:29], vcc')
    k('s_cbranch_execz A_end')
    k('buffer_store_dword v12, v5, s[16:19], s26 offen')
    k('A_end:')
    k('s_endpgm')
    k.fix()
    return kernel_text('stats_kernel', k.text(), 64, 48)


TA, TF = 0, 50688
KC = TF + 16896
KC_CH = 1536
KZERO = KC + 2 * KC_CH
KE = KZERO + 64
UB = KE + 2 * 8320
ZB = UB + 2 * 4608
B_LDS = ZB + 2 * 8192
RED = 0


def cmul(k, d, x, y, t):
    k(f'v_pk_mul_f32 v[{t}:{t + 1}], v[{x}:{x + 1}], v[{y}:{y + 1}] op_sel:[0,0] op_sel_hi:[0,1]')
    k(f'v_pk_fma_f32 v[{d}:{d + 1}], v[{x}:{x + 1}], v[{y}:{y + 1}], v[{t}:{t + 1}] op_sel:[1,1,0] op_sel_hi:[1,0,1] neg_lo:[1,0,0]')


def kern_b():
    k = Asm()
    k('s_cmp_ge_u32 s2, 256')
    k('s_cbranch_scc1 B_end')
    k(f's_load_dwordx8 s[4:11], s[0:1], {A_U}')
    k(f's_load_dwordx4 s[12:15], s[0:1], {A_CI}')
    k(f's_load_dwordx2 s[16:17], s[0:1], {A_DSK}')
    k(f's_load_dwordx2 s[18:19], s[0:1], {D_WS}')
    k('s_and_b32 s3, s2, 7')
    k('s_lshl_b32 s3, s3, 5')
    k('s_lshr_b32 s20, s2, 3')
    k('s_add_u32 s3, s3, s20')
    k('s_lshl_b32 s20, s3, 2')
    k('s_lshl_b32 s21, s3, 9')
    k('v_lshlrev_b32 v1, 1, v0')
    k('v_lshlrev_b32 v2, 13, v0')
    k('v_lshlrev_b32 v3, 5, v0')
    k('s_waitcnt lgkmcnt(0)')
    k('s_load_dword s22, s[14:15], s20')
    k('s_load_dword s23, s[16:17], s20')
    srd(k, 24, 6, 131072)
    srd(k, 28, 8, 131072)
    srd(k, 32, 10, 131072)
    srd(k, 36, 12, 131072)
    srd(k, 40, 4, 2048 * 1024)
    srd(k, 44, 18, 0x2000)
    srd(k, 48, 18, 0x200000, WS_HT)
    for i in range(4):
        k(f'buffer_load_ushort v{4 + i}, v1, s[{24 + 4 * i}:{27 + 4 * i}], s21 offen')
    k('s_add_u32 s52, s20, 4096')
    for e in range(8):
        k(f'buffer_load_dword v{8 + e}, v2, s[40:43], s{20 if e < 4 else 52} offen offset:{(e & 3) * 1024}')
    k('buffer_load_dwordx4 v[16:19], v3, s[44:47], 0 offen')
    k('buffer_load_dwordx4 v[20:23], v3, s[44:47], 0 offen offset:16')
    k('v_lshlrev_b32 v33, 3, v0')
    k('v_sub_u32 v33, 2047, v33')
    for e in range(9):
        d = 24 + e
        k(f'v_subrev_u32 v34, {e}, v33')
        k('v_cvt_f32_i32 v35, v34')
        k('v_cvt_pk_bf16_f32 v35, v35, v35')
        k('v_and_b32 v35, 0xffff0000, v35')
        k('v_cvt_i32_f32 v36, v35')
        k('v_lshrrev_b32 v35, 23, v35')
        k('v_subrev_u32 v35, 134, v35')
        k('v_med3_i32 v35, v35, 0, 3')
        k('v_lshrrev_b32 v37, 7, v36')
        k('v_and_b32 v38, 7, v36')
        k('v_lshl_add_u32 v37, v37, 3, v38')
        k('v_lshrrev_b32 v37, v35, v37')
        k('v_lshl_add_u32 v37, v35, 3, v37')
        k('v_bfe_u32 v38, v36, 3, 4')
        k('v_lshlrev_b32 v38, 1, v38')
        k(f'v_lshl_add_u32 v{d}, v37, 5, v38')
        k(f'v_add_u32 v{d}, {KC}, v{d}')
    k(f'v_mov_b32 v34, {KC + 47 * 32}')
    k('v_cmp_eq_u32 vcc, 255, v0')
    k('v_cndmask_b32 v32, v32, v34, vcc')
    k('v_mov_b32 v34, 0')
    k('v_lshlrev_b32 v35, 2, v0')
    k(f'v_add_u32 v36, {UB}, v35')
    k('v_cmp_gt_u32 vcc, 120, v0')
    k('s_and_saveexec_b64 s[54:55], vcc')
    k('ds_write_b32 v36, v34')
    k('ds_write_b32 v36, v34 offset:4608')
    k('s_mov_b64 exec, s[54:55]')
    k(f'v_add_u32 v36, {KE + 4096}, v35')
    k('v_cmp_gt_u32 vcc, 16, v0')
    k('s_and_saveexec_b64 s[54:55], vcc')
    for o in (0, 4160, 8320, 8320 + 4160):
        k(f'ds_write_b32 v36, v34 offset:{o}')
    k('s_mov_b64 exec, s[54:55]')
    k('v_lshrrev_b32 v42, 7, v0')
    k('v_and_b32 v43, 127, v0')
    k('v_lshlrev_b32 v43, 2, v43')
    k(f'v_mul_u32_u24 v40, {48 * 528}, v42')
    k('v_add_u32 v40, v40, v43')
    k(f'v_mul_u32_u24 v41, {16 * 528}, v42')
    k('v_add_u32 v41, v41, v43')
    k(f'v_add_u32 v41, {TF}, v41')
    k('s_waitcnt lgkmcnt(0)')
    k('v_lshlrev_b32 v42, 4, v42')
    k('v_lshrrev_b32 v44, v42, s22')
    k('v_lshlrev_b32 v44, 16, v44')
    k(f'v_mul_f32 v44, {hex(LOG2E)}, v44')
    k('v_exp_f32 v44, v44')
    bf16round(k, 44, 'v44')
    k('s_waitcnt vmcnt(10)')
    for i in range(4):
        k(f'v_lshlrev_b32 v{4 + i}, 16, v{4 + i}')
    k(f'v_mul_f32 v4, {hex(LOG2E)}, v4')
    k('v_exp_f32 v4, v4')
    bf16round(k, 4, 'v4')
    k('v_mul_f32 v4, v4, v44')
    k(f'v_mul_f32 v4, {hex(LOG2E | 0x80000000)}, v4')
    k('v_mul_f32 v5, v5, v44')
    k(f'v_mul_f32 v5, {hex(INV2PI)}, v5')
    k('v_add_f32 v44, v44, v44')
    F, W1, W8, W128, T0, T1, T2 = 46, 48, 50, 52, 54, 56, 58
    k(f'v_mul_f32 v{F}, v6, v44')
    k(f'v_mul_f32_e64 v{F + 1}, -v7, v44')
    for d, p, conj in ((W1, 1.0, 0), (W8, 8.0, 1), (W128, 128.0, 0)):
        import struct
        lit = hex(struct.unpack('<I', struct.pack('<f', p))[0])
        k(f'v_mul_f32 v60, {lit}, v4')
        k(f'v_mul_f32 v61, {lit}, v5')
        k('v_exp_f32 v60, v60')
        k('v_fract_f32 v61, v61')
        k(f'v_cos_f32 v{d}, v61')
        k(f'v_sin_f32 v{d + 1}, v61')
        k(f'v_mul_f32 v{d}, v{d}, v60')
        k(f'v_mul_f32_e64 v{d + 1}, {"-" if conj else ""}v{d + 1}, v60')
    E = 64
    Q = 80
    P = 82
    pk = [84, 85, 86, 87]
    cnt = [0]

    def put(tab, row, src):
        r = pk[cnt[0] % 4]
        cnt[0] += 1
        k(f'v_cvt_pk_bf16_f32 v{r}, v{src}, v{src + 1}')
        k(f'ds_write_b32 v{40 if tab == "A" else 41}, v{r} offset:{row * 528}')

    k(f'v_mov_b32 v{E}, 1.0')
    k(f'v_mov_b32 v{E + 1}, 0')
    k(f'v_mov_b32 v{E + 2}, v{W1}')
    k(f'v_mov_b32 v{E + 3}, v{W1 + 1}')
    k(f'v_mov_b32 v{Q}, v{W128}')
    k(f'v_mov_b32 v{Q + 1}, v{W128 + 1}')
    put('A', 0, E)
    put('A', 1, E + 2)
    put('F', 0, F)
    fj = 0

    def fstep():
        nonlocal fj
        if fj < 15:
            fj += 1
            cmul(k, F, F, W8, T1)
            put('F', fj, F)

    for r in range(2, 8):
        cmul(k, E + 2 * r, E + 2 * (r - 1), W1, T0)
        fstep()
        put('A', r, E + 2 * r)
    for i in range(1, 17):
        o = 0 if i < 2 else 1 if i < 4 else 2 if i < 8 else 3
        row0 = 8 * o + ((8 * i) >> o)
        put('A', row0, Q)
        for idx, r in enumerate(range(0, 8, 1 << o)):
            if r == 0:
                continue
            cmul(k, P, Q, E + 2 * r, T2)
            put('A', row0 + idx, P)
        if i < 16:
            cmul(k, Q, Q, W128, T0)
        if i >= 7:
            fstep()
    assert fj == 15
    k('s_waitcnt vmcnt(0)')
    X0, X1, MU, RS = 44, 52, 60, 68
    for e in range(8):
        k(f'v_and_b32 v{RS + e}, 0xffff0000, v{16 + e}')
        k(f'v_rcp_f32 v{RS + e}, v{RS + e}')
        k(f'v_lshlrev_b32 v{MU + e}, 16, v{16 + e}')
        k(f'v_lshlrev_b32 v{X0 + e}, 16, v{8 + e}')
        k(f'v_and_b32 v{X1 + e}, 0xffff0000, v{8 + e}')
    k('s_lshl_b32 s56, s23, 16')
    k('s_and_b32 s58, s23, 0xffff0000')
    k('v_lshlrev_b32 v92, 4, v0')
    k(f'v_add_u32 v92, {UB + 480}, v92')
    k(f'v_add_u32 v93, {ZB}, v3')
    for ch, X in ((0, X0), (1, X1)):
        U = 76
        for e in range(0, 8, 2):
            k(f'v_pk_add_f32 v[{U + e}:{U + e + 1}], v[{X + e}:{X + e + 1}], v[{MU + e}:{MU + e + 1}] neg_lo:[0,1] neg_hi:[0,1]')
            k(f'v_pk_mul_f32 v[{U + e}:{U + e + 1}], v[{U + e}:{U + e + 1}], v[{RS + e}:{RS + e + 1}]')
            k(f'v_pk_fma_f32 v[{X + e}:{X + e + 1}], v[{U + e}:{U + e + 1}], s[{56 + 2 * ch}:{57 + 2 * ch}], v[{X + e}:{X + e + 1}] op_sel_hi:[1,0,1]')
            k(f'v_cvt_pk_bf16_f32 v{84 + 4 * ch + e // 2}, v{U + e}, v{U + e + 1}')
        k(f'ds_write_b128 v92, v[{84 + 4 * ch}:{87 + 4 * ch}] offset:{4608 * ch}')
        k(f'ds_write_b128 v93, v[{X}:{X + 3}] offset:{8192 * ch}')
        k(f'ds_write_b128 v93, v[{X + 4}:{X + 7}] offset:{8192 * ch + 16}')
    k('v_and_b32 v4, 15, v0')
    k('v_bfe_u32 v5, v0, 4, 2')
    k('v_lshrrev_b32 v6, 6, v0')
    k('v_readfirstlane_b32 s60, v6')
    k('s_lshr_b32 s61, s60, 1')
    k('s_and_b32 s62, s60, 1')
    k('v_and_b32 v6, 1, v5')
    k('v_lshrrev_b32 v7, 1, v5')
    k('v_lshlrev_b32 v6, 8, v6')
    k('v_lshl_add_u32 v6, v7, 7, v6')
    k('v_mul_u32_u24 v7, 528, v4')
    k('v_add_u32 v6, v6, v7')
    k(f's_mul_i32 s63, s61, {16 * 528}')
    k(f's_add_u32 s63, s63, {TF}')
    k('v_add_u32 v8, s63, v6')
    k(f's_mul_i32 s63, s61, {48 * 528}')
    k(f's_mul_i32 s64, s62, {32 * 528}')
    k('s_add_u32 s63, s63, s64')
    k('v_add_u32 v9, s63, v6')
    k('v_lshlrev_b32 v10, 5, v4')
    k('v_lshl_add_u32 v10, v5, 3, v10')
    k(f's_mul_i32 s63, s61, {KC_CH}')
    k('s_lshl_b32 s64, s62, 10')
    k('s_add_u32 s63, s63, s64')
    k(f's_add_u32 s63, s63, {KC}')
    k('v_add_u32 v10, s63, v10')
    k('s_waitcnt lgkmcnt(0)')
    k('s_barrier')
    FA, EB0, EB1, AC = 44, 76, 108, 36
    for st in range(8):
        k(f'ds_read_b128 v[{FA + 4 * st}:{FA + 4 * st + 3}], v8 offset:{16 * st}')
        k(f'ds_read_b128 v[{EB0 + 4 * st}:{EB0 + 4 * st + 3}], v9 offset:{16 * st}')
        if st % 4 == 3:
            k('s_waitcnt lgkmcnt(0)')
            for q in range(st - 3, st + 1):
                k(f'v_mfma_f32_16x16x32_bf16 v[{AC}:{AC + 3}], v[{FA + 4 * q}:{FA + 4 * q + 3}], v[{EB0 + 4 * q}:{EB0 + 4 * q + 3}], {"0" if q == 0 else v(AC, 4)}')
    k('s_cmp_eq_u32 s62, 1')
    k('s_cbranch_scc1 B_kc1')
    for st in range(8):
        k(f'ds_read_b128 v[{EB1 + 4 * st}:{EB1 + 4 * st + 3}], v9 offset:{16 * 528 + 16 * st}')
    k('s_waitcnt lgkmcnt(0)')
    for q in range(8):
        k(f'v_mfma_f32_16x16x32_bf16 v[{AC + 4}:{AC + 7}], v[{FA + 4 * q}:{FA + 4 * q + 3}], v[{EB1 + 4 * q}:{EB1 + 4 * q + 3}], {"0" if q == 0 else v(AC + 4, 4)}')
    k(f'v_cvt_pk_bf16_f32 v12, v{AC + 4}, v{AC + 5}')
    k(f'v_cvt_pk_bf16_f32 v13, v{AC + 6}, v{AC + 7}')
    k('ds_write_b64 v10, v[12:13] offset:512')
    k('B_kc1:')
    k(f'v_cvt_pk_bf16_f32 v14, v{AC}, v{AC + 1}')
    k(f'v_cvt_pk_bf16_f32 v15, v{AC + 2}, v{AC + 3}')
    k('v_lshl_add_u32 v16, s62, 4, v4')
    k('v_cmp_eq_u32 vcc, 31, v16')
    k('v_cndmask_b32 v14, v14, v34, vcc')
    k('ds_write_b64 v10, v[14:15]')
    k('s_waitcnt lgkmcnt(0)')
    k('s_barrier')
    k('v_lshlrev_b32 v11, 4, v0')
    k(f'v_add_u32 v11, {KE}, v11')
    for ch in range(2):
        G = 44 + 10 * ch
        for e in range(9):
            k(f'ds_read_u16 v{G + e}, v{24 + e} offset:{ch * KC_CH}')
        if ch == 0:
            continue
    for ch in range(2):
        G = 44 + 10 * ch
        k(f's_waitcnt lgkmcnt({9 if ch == 0 else 2})')
        O = 64 + 8 * ch
        for q in range(4):
            k(f'v_lshl_or_b32 v{O + q}, v{G + 2 * q + 1}, 16, v{G + 2 * q}')
            k(f'v_lshl_or_b32 v{O + 4 + q}, v{G + 2 * q + 2}, 16, v{G + 2 * q + 1}')
        k(f'ds_write_b128 v11, v[{O}:{O + 3}] offset:{8320 * ch}')
        k(f'ds_write_b128 v11, v[{O + 4}:{O + 7}] offset:{8320 * ch + 4160}')
    k('v_sub_u32 v12, 1807, v4')
    k('v_lshrrev_b32 v12, 1, v12')
    k('v_lshl_add_u32 v12, v5, 2, v12')
    k('v_lshlrev_b32 v12, 2, v12')
    k('v_and_b32 v13, 1, v4')
    k('v_xor_b32 v13, 1, v13')
    k('v_mul_u32_u24 v13, 4160, v13')
    k('v_add_u32 v12, v12, v13')
    k('s_mul_i32 s63, s61, 8320')
    k('s_lshl_b32 s64, s62, 8')
    k('s_add_u32 s63, s63, s64')
    k(f's_add_u32 s63, s63, {KE - 512}')
    k('v_add_u32 v12, s63, v12')
    for q in range(1, 4):
        k(f'v_subrev_u32 v{12 + q}, {1024 * q}, v12')
    k('v_lshlrev_b32 v16, 5, v4')
    k('v_lshl_add_u32 v16, v5, 4, v16')
    k('s_mul_i32 s63, s61, 4608')
    k('s_add_u32 s63, s63, s64')
    k(f's_add_u32 s63, s63, {UB}')
    k('v_add_u32 v16, s63, v16')
    k('v_lshlrev_b32 v17, 6, v4')
    k('v_lshl_add_u32 v17, v5, 4, v17')
    k('s_lshl_b32 s63, s61, 13')
    k('s_lshl_b32 s64, s62, 12')
    k('s_add_u32 s63, s63, s64')
    k(f's_add_u32 s63, s63, {ZB}')
    k('v_add_u32 v17, s63, v17')
    ZR = 20
    for t in range(4):
        k(f'ds_read_b128 v[{ZR + 4 * t}:{ZR + 4 * t + 3}], v17 offset:{1024 * t}')
    k('s_waitcnt lgkmcnt(0)')
    k('s_barrier')
    ACC = 36
    AF = [68, 132]
    BF = [100, 164]

    def reads(c):
        out = []
        b = c & 1
        for d in range(8):
            off = (128 if d % 2 == 0 else 0) + 16 * c
            r = AF[b] + 4 * d
            out.append(f'ds_read2_b32 v[{r}:{r + 1}], v{12 + d // 2} offset0:{off} offset1:{off + 1}')
            out.append(f'ds_read2_b32 v[{r + 2}:{r + 3}], v{12 + d // 2} offset0:{off + 2} offset1:{off + 3}')
            r = BF[b] + 4 * d
            out.append(f'ds_read_b128 v[{r}:{r + 3}], v16 offset:{512 * d + 64 * c}')
        return out

    started = set()

    def mf(c, d, s_):
        t = d + s_
        b = c & 1
        acc = v(ACC + 4 * t, 4)
        src = acc if t in started else '0'
        started.add(t)
        return f'v_mfma_f32_16x16x32_bf16 {acc}, {v(AF[b] + 4 * d, 4)}, {v(BF[b] + 4 * s_, 4)}, {src}'

    r0 = reads(0)
    order = [[(d, s_) for d in range(lv + 1) for s_ in range(lv + 1) if max(d, s_) == lv and d + s_ < 8] for lv in range(8)]
    for x in r0[:12]:
        k(x)
    r1 = reads(1)
    pend = r0[12:] + r1
    issued = 12
    for lv in range(8):
        needn = 3 * (lv + 1)
        k(f's_waitcnt lgkmcnt({min(issued - needn, 15)})')
        for i, (d, s_) in enumerate(order[lv]):
            k(mf(0, d, s_))
            if pend and issued - needn < 14:
                k(pend.pop(0))
                issued += 1
    for x in pend:
        k(x)
    for c in range(1, 4):
        k('s_waitcnt lgkmcnt(0)')
        pend = reads(c + 1) if c < 3 else []
        for lv in range(8):
            for (d, s_) in order[lv]:
                k(mf(c, d, s_))
                if pend:
                    k(pend.pop(0))
    k('v_and_b32 v18, 63, v0')
    k('v_lshlrev_b32 v18, 4, v18')
    k('s_lshl_b32 s63, s60, 12')
    k('v_add_u32 v19, s63, v18')
    k('s_xor_b32 s63, s63, 4096')
    k('v_add_u32 v18, s63, v18')
    k('s_cmp_eq_u32 s62, 1')
    k('s_cbranch_scc1 B_x1')
    for t in range(4):
        k(f'ds_write_b128 v19, {v(ACC + 16 + 4 * t, 4)} offset:{RED + 1024 * t}')
    for i in range(0, 16, 2):
        k(f'v_pk_add_f32 {v(ZR + i, 2)}, {v(ZR + i, 2)}, {v(ACC + i, 2)}')
    k('s_branch B_x2')
    k('B_x1:')
    for t in range(4):
        k(f'ds_write_b128 v19, {v(ACC + 4 * t, 4)} offset:{RED + 1024 * t}')
    for i in range(0, 16, 2):
        k(f'v_pk_add_f32 {v(ZR + i, 2)}, {v(ZR + i, 2)}, {v(ACC + 16 + i, 2)}')
    k('B_x2:')
    k('s_waitcnt lgkmcnt(0)')
    k('s_barrier')
    for t in range(4):
        k(f'ds_read_b128 {v(68 + 4 * t, 4)}, v18 offset:{RED + 1024 * t}')
    k('v_lshrrev_b32 v6, 1, v4')
    k('v_lshlrev_b32 v6, 15, v6')
    k('v_and_b32 v7, 1, v4')
    k('v_lshl_add_u32 v6, v7, 5, v6')
    k('v_lshl_add_u32 v6, v5, 3, v6')
    k('s_lshl_b32 s63, s3, 7')
    k('s_lshl_b32 s64, s61, 6')
    k('s_add_u32 s63, s63, s64')
    k('s_lshl_b32 s64, s62, 20')
    k('s_add_u32 s63, s63, s64')
    for t in range(4):
        k(f's_waitcnt lgkmcnt({3 - t})')
        for i in (0, 2):
            k(f'v_pk_add_f32 {v(ZR + 4 * t + i, 2)}, {v(ZR + 4 * t + i, 2)}, {v(68 + 4 * t + i, 2)}')
        k(f'v_cvt_pk_bf16_f32 v{84 + 2 * t}, v{ZR + 4 * t}, v{ZR + 4 * t + 1}')
        k(f'v_cvt_pk_bf16_f32 v{85 + 2 * t}, v{ZR + 4 * t + 2}, v{ZR + 4 * t + 3}')
        k(f'buffer_store_dwordx2 {v(84 + 2 * t, 2)}, v6, s[48:51], s63 offen')
        if t < 3:
            k(f's_add_u32 s63, s63, {8 * 32768}')
    k('B_end:')
    k('s_endpgm')
    k.fix()
    return kernel_text('conv_kernel', k.text(), 200, 72)


ST = 41024
GOFF, UOFF = 16384, 16384 + 12288 + 32
C_LDS = 3 * ST + 1024
XCH = 3 * ST


def kern_c():
    k = Asm()
    k('s_cmp_ge_u32 s2, 240')
    k('s_cbranch_scc1 C_end')
    k(f's_load_dwordx4 s[4:7], s[0:1], {W_G}')
    k(f's_load_dwordx2 s[8:9], s[0:1], {D_WS}')
    k('s_and_b32 s3, s2, 7')
    k('s_lshr_b32 s10, s2, 3')
    k('s_lshl_b32 s3, s3, 1')
    k('s_and_b32 s11, s10, 1')
    k('s_add_u32 s3, s3, s11')
    k('s_lshr_b32 s10, s10, 1')
    k('v_lshrrev_b32 v1, 6, v0')
    k('v_readfirstlane_b32 s11, v1')
    k('v_and_b32 v1, 63, v0')
    k('v_lshlrev_b32 v2, 4, v1')
    for j in range(3):
        k(f'v_add_u32 v6, {64 * j}, v1')
        k('v_mul_u32_u24 v7, 5462, v6')
        k('v_lshrrev_b32 v7, 16, v7')
        k('v_mul_u32_u24 v8, 12, v7')
        k('v_sub_u32 v8, v6, v8')
        k('v_mul_u32_u24 v7, 2752, v7')
        k('v_lshl_add_u32 v7, v8, 4, v7')
        k(f'v_subrev_u32 v{3 + j}, {1024 * j}, v7')
    k('s_waitcnt lgkmcnt(0)')
    srd(k, 12, 4, 512 * 2752)
    srd(k, 16, 6, 512 * 2752)
    srd(k, 20, 8, 0x200000, WS_HT)
    srd(k, 24, 8, H_BYTES, WS_H)
    srd(k, 28, 8, 86 * 128, WS_SFR)
    k('s_lshl_b32 s32, s3, 2')
    k('s_add_u32 s32, s32, s11')
    k('s_lshl_b32 s32, s32, 15')
    k(f's_mul_i32 s33, s11, {16 * 2752}')
    k('s_mul_i32 s34, s10, 192')
    k('s_add_u32 s33, s33, s34')
    k('s_lshl_b32 s34, s11, 12')
    k('s_mul_i32 s35, s11, 3072')

    def dma(c):
        st = (c % 3) * ST
        out = []
        out.append([f's_add_u32 m0, s34, {st}'] + ['buffer_load_dwordx4 v2, s[20:23], s32 offen lds'])
        for j in range(1, 4):
            out.append([f'buffer_load_dwordx4 v2, s[20:23], s32 offen offset:{1024 * j} lds'])
        for off, sr in ((GOFF, 12), (UOFF, 16)):
            for j in range(3):
                x = [f's_add_u32 m0, s35, {st + off}'] if j == 0 else []
                x.append(f'buffer_load_dwordx4 v{3 + j}, s[{sr}:{sr + 3}], s33 offen offset:{1024 * j} lds')
                out.append(x)
        out[-1] += ['s_add_u32 s32, s32, 4096', f's_add_u32 s33, s33, {64 * 2752}']
        return out

    for c in range(3):
        for x in dma(c):
            k('\n'.join(x))
    k('s_lshr_b32 s36, s11, 1')
    k('s_and_b32 s37, s11, 1')
    k('s_mul_i32 s38, s10, 6')
    k('s_mul_i32 s39, s37, 3')
    k('s_add_u32 s38, s38, s39')
    k('s_lshl_b32 s39, s38, 7')
    k('v_lshlrev_b32 v6, 2, v1')
    k('v_mov_b32 v7, 0x7fffffff')
    k('v_cmp_gt_u32 vcc, 32, v1')
    k('v_cndmask_b32 v6, v7, v6, vcc')
    SF = 20
    for u in range(3):
        k(f'buffer_load_dword v{SF + 4 * u}, v6, s[28:31], s39 offen offset:{128 * u}')
        for i in range(1, 4):
            k(f'v_mov_b32 v{SF + 4 * u + i}, 0')
    k('v_lshrrev_b32 v6, 5, v1')
    k('v_bfe_u32 v7, v1, 2, 2')
    k('v_lshl_add_u32 v6, v6, 3, v7')
    k('v_bfe_u32 v7, v1, 4, 1')
    k('v_and_b32 v8, 3, v1')
    k('v_lshlrev_b32 v9, 6, v6')
    k('v_lshl_add_u32 v9, v7, 5, v9')
    k('v_lshl_add_u32 v9, v8, 3, v9')
    k('s_lshl_b32 s40, s36, 13')
    k('s_lshl_b32 s41, s37, 12')
    k('s_add_u32 s40, s40, s41')
    k('v_add_u32 v10, s40, v9')
    k('v_xor_b32 v13, 4096, v10')
    k('v_lshlrev_b32 v9, 1, v8')
    k('v_lshrrev_b32 v8, 1, v8')
    k('v_or_b32 v8, v8, v9')
    k('v_and_b32 v8, 3, v8')
    k('v_mul_u32_u24 v9, 192, v6')
    k('v_lshl_add_u32 v9, v8, 3, v9')
    k(f'v_mul_u32_u24 v7, {UOFF - GOFF}, v7')
    k('v_add_u32 v9, v9, v7')
    k('s_mul_i32 s40, s37, 96')
    k(f's_add_u32 s40, s40, {GOFF}')
    k('v_add_u32 v16, s40, v9')
    for b in (10, 13, 16):
        for st in (1, 2):
            k(f'v_add_u32 v{b + st}, {st * ST}, v{b}')
    S1, S2 = 32, 33
    k(f'v_mov_b32 v{S1}, 0')
    k(f'v_mov_b32 v{S2}, 0')
    k('s_mov_b32 s42, 0x3f803f80')
    FR = [36, 56]
    ACC = 76

    def reads(c, ks):
        st = c % 3
        b = FR[ks & 1]
        out = []
        for nm in ('B0', 'A0', 'B1', 'A1', 'A2'):
            idx = int(nm[1])
            for e in range(2):
                if nm[0] == 'A':
                    r = b + 4 * idx + 2 * e
                    out.append(f'ds_read_b64_tr_b16 {v(r, 2)}, v{16 + st} offset:{ks * 3072 + e * 768 + idx * 32}')
                else:
                    r = b + 12 + 4 * idx + 2 * e
                    out.append(f'ds_read_b64_tr_b16 {v(r, 2)}, v{10 + 3 * idx + st} offset:{ks * 1024 + e * 256}')
        return out

    k('s_waitcnt vmcnt(23)')
    k('s_barrier')
    for x in reads(0, 0):
        k(x)
    for c in range(8):
        for ks in range(4):
            b = FR[ks & 1]
            k('s_waitcnt lgkmcnt(0)')
            fill = []
            if ks < 3:
                fill = [[x] for x in reads(c, ks + 1)]
            elif c < 7:
                n = 0
                if c + 2 <= 7:
                    n += 10
                if c == 0:
                    n += 3
                k(f's_waitcnt vmcnt({n})')
                k('s_barrier')
                fill = [[x] for x in reads(c + 1, 0)]
                if c + 3 <= 7:
                    fill += dma(c + 3)
            dots = []
            for i in range(4):
                dots.append([f'v_dot2c_f32_bf16 v{S1}, s42, v{b + 12 + i}'])
                dots.append([f'v_dot2c_f32_bf16 v{S2}, v{b + 12 + i}, v{b + 12 + i}'])
            fill = fill + dots
            per = -(-len(fill) // 6)
            for u in range(3):
                for i in range(2):
                    acc = v(ACC + 16 * (2 * u + i), 16)
                    src = '0' if (c == 0 and ks == 0) else acc
                    k(f'v_mfma_f32_32x32x16_bf16 {acc}, {v(b + 4 * u, 4)}, {v(b + 12 + 4 * i, 4)}, {src}')
                    for x in fill[:per]:
                        k('\n'.join(x))
                    fill = fill[per:]
    for r in (S1, S2):
        k(f'v_mov_b32 v34, v{r}')
        k(f'v_permlane32_swap_b32 v{r}, v34')
        k(f'v_add_f32 v{r}, v{r}, v34')
        k(f'v_mul_f32 v{r}, 0x3b000000, v{r}')
    k(f'v_fma_f32 v{S2}, -v{S1}, v{S1}, v{S2}')
    k(f'v_max_f32 v{S2}, 0, v{S2}')
    bf16round(k, S2, f'v{S2}')
    k(f'v_add_f32 v{S2}, 0x3727c5ac, v{S2}')
    bf16round(k, S2, f'v{S2}')
    k(f'v_sqrt_f32 v{S2}, v{S2}')
    k(f'v_cvt_pk_bf16_f32 v34, -v{S1}, v{S2}')
    k('v_lshlrev_b32 v6, 2, v1')
    k('s_lshl_b32 s40, s11, 8')
    k(f's_add_u32 s40, s40, {XCH}')
    k('v_add_u32 v7, s40, v6')
    k('s_xor_b32 s41, s11, 1')
    k('s_lshl_b32 s41, s41, 8')
    k(f's_add_u32 s41, s41, {XCH}')
    k('v_add_u32 v6, s41, v6')
    k('ds_write_b32 v7, v34')
    k('s_waitcnt lgkmcnt(0)')
    k('s_barrier')
    k('ds_read_b32 v35, v6')
    k('s_mov_b32 s43, 0x01000100')
    MB = 36
    for i in range(2):
        for j in range(1, 4):
            k(f'v_mov_b32 v{MB + 4 * i + j}, 0')
    k('s_waitcnt lgkmcnt(0)')
    SG, CR = 44, 48
    for i in range(2):
        k(f'v_perm_b32 v{MB + 4 * i}, v{34 + i}, v{34 + i}, s43')
        k(f'v_and_b32 v{SG + 2 * i}, 0xffff0000, v{34 + i}')
        k(f'v_rcp_f32 v{CR + 2 * i}, v{SG + 2 * i}')
        k(f'v_mul_f32 v{CR + 2 * i}, {hex(LOG2E | 0x80000000)}, v{CR + 2 * i}')
    for u in range(3):
        for i in range(2):
            acc = v(ACC + 16 * (2 * u + i), 16)
            k(f'v_mfma_f32_32x32x16_bf16 {acc}, {v(SF + 4 * u, 4)}, {v(MB + 4 * i, 4)}, {acc}')
    k('s_lshl_b32 s40, s3, 2')
    k('s_lshl_b32 s41, s36, 1')
    k('s_add_u32 s40, s40, s41')
    k('s_add_u32 s40, s40, s37')
    k('s_xor_b32 s41, s40, 1')
    for r in (40, 41):
        k(f's_mul_i32 s{r}, s{r}, 86')
        k(f's_add_u32 s{r}, s{r}, s38')
        k(f's_lshl_b32 s{r}, s{r}, 10')
    for u in range(3):
        k(f's_add_u32 s44, s38, {u}')
        k('s_cmp_ge_u32 s44, 86')
        k('s_cbranch_scc1 C_end')
        for i in range(2):
            b = ACC + 16 * (2 * u + i)
            for j in range(0, 8, 2):
                k(f'v_pk_mul_f32 {v(b + j, 2)}, {v(b + j, 2)}, {v(CR + 2 * i, 2)} op_sel_hi:[1,0]')
            for j in range(8):
                k(f'v_exp_f32 v{b + j}, v{b + j}')
            for j in range(0, 8, 2):
                k(f'v_pk_fma_f32 {v(b + j, 2)}, {v(b + j, 2)}, {v(SG + 2 * i, 2)}, {v(SG + 2 * i, 2)} op_sel_hi:[1,0,0]')
            for j in range(8):
                k(f'v_rcp_f32 v{b + j}, v{b + j}')
            for j in range(0, 8, 2):
                k(f'v_pk_mul_f32 {v(b + j, 2)}, {v(b + j, 2)}, {v(b + 8 + j, 2)}')
            for j in range(4):
                k(f'v_cvt_pk_bf16_f32 v{b + 8 + j}, v{b + 2 * j}, v{b + 2 * j + 1}')
            k(f'buffer_store_dwordx4 {v(b + 8, 4)}, v2, s[24:27], s{40 + i} offen offset:{1024 * u}')
    k('C_end:')
    k('s_endpgm')
    k.fix()
    return kernel_text('gemm1_kernel', k.text(), 172, 64)


D_LDS = 4 * 32768
NS = 22
RING = 15


def kern_d():
    k = Asm()
    k('s_cmp_ge_u32 s2, 256')
    k('s_cbranch_scc1 D_end')
    k(f's_load_dwordx4 s[4:7], s[0:1], {W_D}')
    k(f's_load_dwordx2 s[8:9], s[0:1], {D_WS}')
    k('s_and_b32 s3, s2, 7')
    k('s_lshr_b32 s10, s2, 3')
    k('s_lshl_b32 s3, s3, 2')
    k('s_and_b32 s11, s10, 3')
    k('s_add_u32 s3, s3, s11')
    k('s_lshr_b32 s10, s10, 2')
    k('v_lshrrev_b32 v1, 6, v0')
    k('v_readfirstlane_b32 s11, v1')
    k('v_and_b32 v1, 63, v0')
    k('v_lshlrev_b32 v2, 4, v1')
    k('v_lshrrev_b32 v4, 3, v1')
    k('v_and_b32 v5, 7, v1')
    k('v_bfe_u32 v6, v1, 4, 1')
    k('v_lshlrev_b32 v6, 2, v6')
    k('v_xor_b32 v5, v5, v6')
    k('v_lshlrev_b32 v4, 10, v4')
    k('v_lshl_add_u32 v4, v5, 4, v4')
    k(f'v_add_u32 v5, {8192 - 1024}, v4')
    k('s_waitcnt lgkmcnt(0)')
    srd(k, 12, 4, 1376 * 1024)
    srd(k, 16, 6, 2048 * 1024)
    srd(k, 20, 8, 0x200000, WS_HT)
    srd(k, 24, 8, H_BYTES, WS_H)
    k('s_and_b32 s28, s11, 1')
    k('s_lshr_b32 s29, s11, 1')
    k(f's_mul_i32 s30, s11, {NS}')
    k('s_lshl_b32 s31, s30, 14')
    k('s_lshl_b32 s32, s10, 7')
    k('s_add_u32 s31, s31, s32')
    k('s_lshl_b32 s33, s3, 1')
    k('s_add_u32 s33, s33, s29')
    k('s_xor_b32 s34, s33, 1')
    for r, d in ((33, 35), (34, 36)):
        k(f's_mul_i32 s{d}, s{r}, 86')
        k(f's_add_u32 s{d}, s{d}, s30')
        k(f's_lshl_b32 s{d}, s{d}, 10')
    k('s_lshl_b32 s37, s11, 15')
    k('s_cmp_eq_u32 s11, 3')
    k('s_cselect_b32 s38, 0x7fffffff, 0')
    k('v_or_b32 v3, s38, v2')
    HB = 112
    ACC = 48

    def loads(j):
        sl = j % 16
        vo = 'v2' if j < 20 else 'v3'
        return [f's_add_u32 m0, s37, {sl * 2048}',
                'buffer_load_dwordx4 v4, s[12:15], s31 offen lds',
                'buffer_load_dwordx4 v5, s[12:15], s31 offen offset:1024 lds',
                f'buffer_load_dwordx4 {v(HB + 8 * sl, 4)}, {vo}, s[24:27], s35 offen',
                f'buffer_load_dwordx4 {v(HB + 8 * sl + 4, 4)}, {vo}, s[24:27], s36 offen',
                's_add_u32 s31, s31, 16384', 's_add_u32 s35, s35, 1024', 's_add_u32 s36, s36, 1024']

    AHEAD = 11
    for j in range(AHEAD):
        for x in loads(j):
            k(x)
    k('v_and_b32 v6, 31, v1')
    k('v_lshrrev_b32 v7, 5, v1')
    k('v_lshlrev_b32 v8, 1, v6')
    k('v_lshl_add_u32 v8, v7, 10, v8')
    k('s_lshl_b32 s39, s33, 15')
    k('s_lshl_b32 s40, s10, 12')
    k('s_add_u32 s39, s39, s40')
    k('s_lshl_b32 s40, s28, 11')
    k('s_add_u32 s39, s39, s40')
    RES = 16
    for j in range(16):
        k(f'buffer_load_ushort v{RES + j}, v8, s[20:23], s39 offen offset:{64 * j}')
    k('v_lshlrev_b32 v9, 10, v6')
    k('v_lshl_add_u32 v9, v7, 5, v9')
    k('s_lshl_b32 s41, s33, 15')
    k('s_lshl_b32 s40, s10, 7')
    k('s_add_u32 s41, s41, s40')
    k('s_lshl_b32 s40, s28, 6')
    k('s_add_u32 s41, s41, s40')
    k('v_bfe_u32 v6, v1, 2, 2')
    k('v_lshl_add_u32 v7, v7, 3, v6')
    k('v_lshlrev_b32 v10, 7, v7')
    k('v_lshrrev_b32 v6, 1, v6')
    k('v_xor_b32 v6, s28, v6')
    k('v_lshl_add_u32 v10, v6, 6, v10')
    k('v_and_b32 v6, 1, v1')
    k('v_bfe_u32 v7, v1, 1, 1')
    k('v_bfe_u32 v11, v1, 4, 1')
    k('v_lshl_add_u32 v7, v11, 1, v7')
    k('v_lshl_add_u32 v6, v6, 2, v7')
    k('v_lshl_add_u32 v10, v6, 3, v10')
    k('v_add_u32 v10, s37, v10')
    k('v_xor_b32 v11, 64, v10')
    AF = [32, 40]

    def reads(j):
        sl = j % 16
        b = AF[j & 1]
        return [f'ds_read_b64_tr_b16 {v(b + 4 * a_ + 2 * e, 2)}, v{10 + a_} offset:{sl * 2048 + e * 512}'
                for a_ in range(2) for e in range(2)]

    seq = []
    for j in range(AHEAD):
        seq += [('s', j)] * 4
    seq += [('r', 0)] * 16

    def wait_for(tag):
        last = max(i for i, x in enumerate(seq) if x == tag)
        k(f's_waitcnt vmcnt({len(seq) - 1 - last})')

    wait_for(('s', 0))
    for x in reads(0):
        k(x)
    for j in range(NS):
        b = AF[j & 1]
        sl = j % 16
        if j + 1 < NS:
            wait_for(('s', j + 1))
        k('s_waitcnt lgkmcnt(0)')
        fill = reads(j + 1) if j + 1 < NS else []
        if j + AHEAD < NS:
            fill += loads(j + AHEAD)
            seq += [('s', j + AHEAD)] * 4
        per = -(-len(fill) // 4)
        for a_ in range(2):
            for i in range(2):
                acc = v(ACC + 16 * (2 * i + a_), 16)
                src = '0' if j == 0 else acc
                k(f'v_mfma_f32_32x32x16_bf16 {acc}, {v(b + 4 * a_, 4)}, {v(HB + 8 * sl + 4 * i, 4)}, {src}')
                for x in fill[:per]:
                    k(x)
                fill = fill[per:]
    k('s_barrier')
    for x in range(1, 4):
        k(f's_xor_b32 s40, s11, {x}')
        k('s_lshl_b32 s40, s40, 14')
        k(f's_add_u32 s40, s40, {4096 * x}')
        k(f'v_add_u32 v{11 + x}, s40, v2')
    for x in range(1, 4):
        for q in range(4):
            k(f'ds_write_b128 v{11 + x}, {v(ACC + 16 * x + 4 * q, 4)} offset:{1024 * q}')
    for j in range(16):
        k(f'v_lshlrev_b32 v{RES + j}, 16, v{RES + j}')
    for j in range(0, 16, 2):
        k(f'v_pk_add_f32 {v(ACC + j, 2)}, {v(ACC + j, 2)}, {v(RES + j, 2)}')
    k('s_lshl_b32 s40, s11, 14')
    k('v_add_u32 v15, s40, v2')
    k('s_waitcnt lgkmcnt(0)')
    k('s_barrier')
    for x in range(1, 4):
        for q in range(4):
            k(f'ds_read_b128 {v(HB + 16 * x + 4 * q, 4)}, v15 offset:{4096 * x + 1024 * q}')
    for x in range(1, 4):
        k(f's_waitcnt lgkmcnt({4 * (3 - x)})')
        for j in range(0, 16, 2):
            k(f'v_pk_add_f32 {v(ACC + j, 2)}, {v(ACC + j, 2)}, {v(HB + 16 * x + j, 2)}')
    for j in range(8):
        k(f'v_cvt_pk_bf16_f32 v{RES + j}, v{ACC + 2 * j}, v{ACC + 2 * j + 1}')
    k(f'buffer_store_dwordx4 {v(RES, 4)}, v9, s[16:19], s41 offen')
    k(f'buffer_store_dwordx4 {v(RES + 4, 4)}, v9, s[16:19], s41 offen offset:16')
    k('D_end:')
    k('s_endpgm')
    k.fix()
    return kernel_text('gemm2_kernel', k.text(), 240, 64)


def main(path):
    launch = (f'; @launch kernel=stats_kernel grid=(256,1,1) block=(256,1,1) lds=256\n'
              f'; @launch kernel=conv_kernel grid=(256,1,1) block=(256,1,1) lds={B_LDS}\n'
              f'; @launch kernel=gemm1_kernel grid=(240,1,1) block=(256,1,1) lds={C_LDS}\n'
              f'; @launch kernel=gemm2_kernel grid=(256,1,1) block=(256,1,1) lds={D_LDS}\n')
    txt = HEADER + launch + '.amdgcn_target "amdgcn-amd-amdhsa--gfx950"\n' + kern_a() + kern_b() + kern_c() + kern_d()
    open(path, 'w').write(txt)


if __name__ == '__main__':
    main(sys.argv[1] if len(sys.argv) > 1 else 'cdna_kernels/' + NAME + '.s')
```

```python
import v1
from asmlib import *
base = open('cdna_kernels/' + v1.NAME + '.s').read()
empty = kernel_text('empty_kernel', '    s_endpgm\n', 8, 16)
def with_extra(n, where):
    lines = base.split('\n')
    idx = [i for i, l in enumerate(lines) if l.startswith('; @launch')]
    ex = ['; @launch kernel=empty_kernel grid=(256,1,1) block=(256,1,1) lds=0'] * n
    if where == 'end':
        lines[idx[-1] + 1:idx[-1] + 1] = ex
    else:
        lines[idx[0]:idx[0]] = ex
    return '\n'.join(lines) + empty
open('x_end4.s', 'w').write(with_extra(4, 'end'))
open('x_beg4.s', 'w').write(with_extra(4, 'beg'))
open('x_end8.s', 'w').write(with_extra(8, 'end'))
lines = base.split('\n')
idx = [i for i, l in enumerate(lines) if l.startswith('; @launch')]
lines[idx[-1] + 1:idx[-1] + 1] = [lines[i] for i in idx]
open('x_twice.s', 'w').write('\n'.join(lines))
```

```python
import sys
from asmlib import *

NAME = 'sequential_preLN__ssm_conv_s4d__glu_gated_glu__prompt'
HEADER = open('cdna_kernels/' + NAME + '.s.ref').read().split('; Override')[0]

A_U, A_LAR, A_AIM, A_CR, A_CI, A_LDT, A_DSK, B_X, W_G, W_U, W_D, D_OUT, D_DBG, D_WS = [8 * i for i in range(14)]
WS_STAT = 0
WS_SFR = 0x4000
WS_HT = 0x100000
WS_H = 0x400000
H_BYTES = 64 * 86 * 1024
LOG2E = 0x3fb8aa3b
INV2PI = 0x3e22f983


DIAG = False
WS_DIAG = 0x1000000
SB = 66


class Stamps:
    def __init__(self, k, kid):
        self.k, self.kid, self.n = k, kid, 0
        if DIAG:
            k(f's_memrealtime s[{SB}:{SB + 1}]')
            k('v_lshrrev_b32 v255, 6, v0')
            self.n = 1
            self()

    def __call__(self):
        if DIAG:
            r = SB + 2 * self.n
            self.k(f's_memtime s[{r}:{r + 1}]')
            self.n += 1

    def finish(self):
        if not DIAG:
            return
        k = self.k
        k('s_waitcnt vmcnt(0)')
        self()
        r = SB + 2 * self.n
        k(f's_memrealtime s[{r}:{r + 1}]')
        self.n += 1
        k('s_mov_b64 exec, -1')
        k(f's_load_dwordx2 s[4:5], s[0:1], {D_WS}')
        k('s_waitcnt lgkmcnt(0)')
        srd(k, 8, 4, 0x1000000, WS_DIAG)
        k('s_getreg_b32 s6, hwreg(HW_REG_XCC_ID)')
        k('v_mov_b32 v254, s6')
        for i in range(self.n):
            k(f'v_writelane_b32 v254, s{SB + 2 * i}, {i}')
        k('v_mbcnt_lo_u32_b32 v253, -1, 0')
        k('v_lshlrev_b32 v253, 2, v253')
        k('v_lshl_add_u32 v253, v255, 6, v253')
        k('s_lshl_b32 s6, s2, 9')
        k(f's_add_u32 s6, s6, {self.kid * 0x40000}')
        k('s_mov_b64 exec, 0xffff')
        k('buffer_store_dword v254, v253, s[8:11], s6 offen')


def srd(k, d, b, nbytes, off=0):
    if off:
        k(f's_add_u32 s{d}, s{b}, {hex(off)}')
        k(f's_addc_u32 s{d + 1}, s{b + 1}, 0')
    else:
        k(f's_mov_b32 s{d}, s{b}')
        k(f's_mov_b32 s{d + 1}, s{b + 1}')
    k(f's_mov_b32 s{d + 2}, {hex(nbytes)}')
    k(f's_mov_b32 s{d + 3}, 0x20000')


def allreduce(k, regs, tmp, first=0):
    steps = ['quad_perm:[1,0,3,2]', 'quad_perm:[2,3,0,1]', 'row_half_mirror', 'row_mirror']
    if first == 1:
        steps = ['quad_perm:[2,3,0,1]', 'row_ror:4', 'row_ror:8']
    for st in steps:
        for r in regs:
            k(f'v_add_f32_dpp v{r}, v{r}, v{r} {st} row_mask:0xf bank_mask:0xf')
    for op in ('v_permlane16_swap_b32', 'v_permlane32_swap_b32'):
        for i, r in enumerate(regs):
            k(f'v_mov_b32 v{tmp + i}, v{r}')
        for i, r in enumerate(regs):
            k(f'{op} v{r}, v{tmp + i}')
        for i, r in enumerate(regs):
            k(f'v_add_f32 v{r}, v{r}, v{tmp + i}')


def bf16round(k, d, srcreg):
    k(f'v_cvt_pk_bf16_f32 v{d}, {srcreg}, {srcreg}')
    k(f'v_and_b32 v{d}, 0xffff0000, v{d}')


def kern_a():
    k = Asm()
    k('s_cmp_ge_u32 s2, 256')
    k('s_cbranch_scc1 A_exit')
    st_ = Stamps(k, 0)
    k(f's_load_dwordx2 s[4:5], s[0:1], {A_U}')
    k(f's_load_dwordx4 s[8:11], s[0:1], {W_G}')
    k(f's_load_dwordx2 s[6:7], s[0:1], {D_WS}')
    k('v_lshrrev_b32 v1, 6, v0')
    k('v_and_b32 v2, 63, v0')
    k('v_lshlrev_b32 v3, 4, v2')
    k('v_lshl_add_u32 v3, v1, 11, v3')
    k('s_lshl_b32 s3, s2, 13')
    k('v_lshrrev_b32 v40, 1, v0')
    k('v_mul_u32_u24 v40, 2752, v40')
    k('v_and_b32 v41, 1, v0')
    k('v_lshl_add_u32 v40, v41, 4, v40')
    k('s_waitcnt lgkmcnt(0)')
    srd(k, 12, 4, 2048 * 1024)
    srd(k, 16, 6, 0x8000)
    k('s_cmp_ge_u32 s2, 86')
    k('s_cselect_b32 s20, s10, s8')
    k('s_cselect_b32 s21, s11, s9')
    k('s_cselect_b32 s24, 86, 0')
    k('s_cselect_b32 s25, 64, 0')
    k(f's_mov_b32 s22, {512 * 2752}')
    k('s_mov_b32 s23, 0x20000')
    k('s_sub_u32 s24, s2, s24')
    k('buffer_load_dwordx4 v[4:7], v3, s[12:15], s3 offen')
    k('buffer_load_dwordx4 v[8:11], v3, s[12:15], s3 offen offset:1024')
    k('s_cmp_ge_u32 s2, 172')
    k('s_cbranch_scc1 A_nocs0')
    k('s_lshl_b32 s26, s24, 5')
    for i in range(4):
        k(f'buffer_load_dwordx4 v[{44 + 4 * i}:{47 + 4 * i}], v40, s[20:23], s26 offen')
        if i < 3:
            k(f's_add_u32 s26, s26, {128 * 2752}')
    k('s_waitcnt vmcnt(4)')
    k('s_branch A_go')
    k('A_nocs0:')
    k('s_waitcnt vmcnt(0)')
    k('A_go:')
    st_()
    for r in range(2):
        for i in range(4):
            k(f'v_lshlrev_b32 v{12 + 8 * r + 2 * i}, 16, v{4 + 4 * r + i}')
            k(f'v_and_b32 v{13 + 8 * r + 2 * i}, 0xffff0000, v{4 + 4 * r + i}')
    for r in range(2):
        b = 12 + 8 * r
        k(f'v_add_f32 v{28 + r}, v{b}, v{b + 1}')
        for i in range(2, 8):
            k(f'v_add_f32 v{28 + r}, v{28 + r}, v{b + i}')
    allreduce(k, [28, 29], 32)
    for r in range(2):
        k(f'v_mul_f32 v{28 + r}, 0x3b000000, v{28 + r}')
    for r in range(2):
        b = 12 + 8 * r
        for i in range(8):
            k(f'v_sub_f32 v{b + i}, v{b + i}, v{28 + r}')
        k(f'v_mul_f32 v{30 + r}, v{b}, v{b}')
        for i in range(1, 8):
            k(f'v_fmac_f32 v{30 + r}, v{b + i}, v{b + i}')
    allreduce(k, [30, 31], 32)
    for r in range(2):
        k(f'v_mul_f32 v{30 + r}, 0x3b000000, v{30 + r}')
        bf16round(k, 30 + r, f'v{30 + r}')
        k(f'v_add_f32 v{30 + r}, 0x3727c5ac, v{30 + r}')
        bf16round(k, 30 + r, f'v{30 + r}')
        k(f'v_sqrt_f32 v{30 + r}, v{30 + r}')
        k(f'v_cvt_pk_bf16_f32 v{34 + r}, v{28 + r}, v{30 + r}')
    st_()
    k('v_lshlrev_b32 v3, 3, v1')
    k('s_lshl_b32 s3, s2, 5')
    k('s_mov_b64 exec, 1')
    k('buffer_store_dwordx2 v[34:35], v3, s[16:19], s3 offen')
    k('s_mov_b64 exec, -1')
    k('s_cmp_ge_u32 s2, 172')
    k('s_cbranch_scc1 A_end')
    k('s_waitcnt vmcnt(1)')
    for i in range(4):
        for j in range(4):
            src = 44 + 4 * i + j
            if i == 0:
                k(f'v_lshlrev_b32 v{12 + 2 * j}, 16, v{src}')
                k(f'v_and_b32 v{13 + 2 * j}, 0xffff0000, v{src}')
            else:
                k(f'v_lshlrev_b32 v20, 16, v{src}')
                k(f'v_and_b32 v21, 0xffff0000, v{src}')
                k(f'v_pk_add_f32 v[{12 + 2 * j}:{13 + 2 * j}], v[{12 + 2 * j}:{13 + 2 * j}], v[20:21]')
    allreduce(k, list(range(12, 20)), 20, first=1)
    k('v_lshlrev_b32 v3, 6, v1')
    k('v_lshl_add_u32 v3, v41, 5, v3')
    k('s_mov_b64 exec, 3')
    k('ds_write_b128 v3, v[12:15]')
    k('ds_write_b128 v3, v[16:19] offset:16')
    k('s_mov_b64 exec, -1')
    k('s_waitcnt lgkmcnt(0)')
    k('s_barrier')
    k('v_and_b32 v3, 15, v0')
    k('v_lshlrev_b32 v4, 2, v3')
    k('ds_read2_b32 v[12:13], v4 offset0:0 offset1:16')
    k('ds_read2_b32 v[14:15], v4 offset0:32 offset1:48')
    k('v_lshrrev_b32 v5, 2, v3')
    k('v_lshlrev_b32 v6, 1, v5')
    k('v_lshrrev_b32 v5, 1, v5')
    k('v_or_b32 v5, v5, v6')
    k('v_and_b32 v5, 3, v5')
    k('v_and_b32 v6, 3, v3')
    k('v_lshl_add_u32 v5, v5, 2, v6')
    k('v_lshlrev_b32 v5, 2, v5')
    k('s_lshl_b32 s26, s24, 7')
    k('s_add_u32 s26, s26, s25')
    k(f's_add_u32 s26, s26, {WS_SFR}')
    k('s_waitcnt lgkmcnt(0)')
    k('v_add_f32 v12, v12, v13')
    k('v_add_f32 v14, v14, v15')
    k('v_add_f32 v12, v12, v14')
    bf16round(k, 13, 'v12')
    k('v_sub_f32 v14, v12, v13')
    k('v_cvt_pk_bf16_f32 v12, v13, v14')
    k('v_cmp_gt_u32 vcc, 16, v0')
    k('s_and_saveexec_b64 s[28:29], vcc')
    k('s_cbranch_execz A_end')
    k('buffer_store_dword v12, v5, s[16:19], s26 offen')
    k('A_end:')
    st_.finish()
    k('A_exit:')
    k('s_endpgm')
    k.fix()
    return kernel_text('stats_kernel', k.text(), 256 if DIAG else 64, 100 if DIAG else 48)


TA, TF = 0, 50688
KC = TF + 16896
KC_CH = 1536
KZERO = KC + 2 * KC_CH
KE = KZERO + 64
UB = KE + 2 * 8320
ZB = UB + 2 * 4608
B_LDS = ZB + 2 * 8192
RED = 0


def cmul(k, d, x, y, t):
    k(f'v_pk_mul_f32 v[{t}:{t + 1}], v[{x}:{x + 1}], v[{y}:{y + 1}] op_sel:[0,0] op_sel_hi:[0,1]')
    k(f'v_pk_fma_f32 v[{d}:{d + 1}], v[{x}:{x + 1}], v[{y}:{y + 1}], v[{t}:{t + 1}] op_sel:[1,1,0] op_sel_hi:[1,0,1] neg_lo:[1,0,0]')


def kern_b():
    k = Asm()
    k('s_cmp_ge_u32 s2, 256')
    k('s_cbranch_scc1 B_exit')
    st_ = Stamps(k, 1)
    k(f's_load_dwordx8 s[4:11], s[0:1], {A_U}')
    k(f's_load_dwordx4 s[12:15], s[0:1], {A_CI}')
    k(f's_load_dwordx2 s[16:17], s[0:1], {A_DSK}')
    k(f's_load_dwordx2 s[18:19], s[0:1], {D_WS}')
    k('s_and_b32 s3, s2, 7')
    k('s_lshl_b32 s3, s3, 5')
    k('s_lshr_b32 s20, s2, 3')
    k('s_add_u32 s3, s3, s20')
    k('s_lshl_b32 s20, s3, 2')
    k('s_lshl_b32 s21, s3, 9')
    k('v_lshlrev_b32 v1, 1, v0')
    k('v_lshlrev_b32 v2, 13, v0')
    k('v_lshlrev_b32 v3, 5, v0')
    k('s_waitcnt lgkmcnt(0)')
    k('s_load_dword s22, s[14:15], s20')
    k('s_load_dword s23, s[16:17], s20')
    srd(k, 24, 6, 131072)
    srd(k, 28, 8, 131072)
    srd(k, 32, 10, 131072)
    srd(k, 36, 12, 131072)
    srd(k, 40, 4, 2048 * 1024)
    srd(k, 44, 18, 0x2000)
    srd(k, 48, 18, 0x200000, WS_HT)
    for i in range(4):
        k(f'buffer_load_ushort v{4 + i}, v1, s[{24 + 4 * i}:{27 + 4 * i}], s21 offen')
    k('s_add_u32 s52, s20, 4096')
    for e in range(8):
        k(f'buffer_load_dword v{8 + e}, v2, s[40:43], s{20 if e < 4 else 52} offen offset:{(e & 3) * 1024}')
    k('buffer_load_dwordx4 v[16:19], v3, s[44:47], 0 offen')
    k('buffer_load_dwordx4 v[20:23], v3, s[44:47], 0 offen offset:16')
    st_()
    k('v_lshlrev_b32 v33, 3, v0')
    k('v_sub_u32 v33, 2047, v33')
    for e in range(9):
        d = 24 + e
        k(f'v_subrev_u32 v34, {e}, v33')
        k('v_cvt_f32_i32 v35, v34')
        k('v_cvt_pk_bf16_f32 v35, v35, v35')
        k('v_and_b32 v35, 0xffff0000, v35')
        k('v_cvt_i32_f32 v36, v35')
        k('v_lshrrev_b32 v35, 23, v35')
        k('v_subrev_u32 v35, 134, v35')
        k('v_med3_i32 v35, v35, 0, 3')
        k('v_lshrrev_b32 v37, 7, v36')
        k('v_and_b32 v38, 7, v36')
        k('v_lshl_add_u32 v37, v37, 3, v38')
        k('v_lshrrev_b32 v37, v35, v37')
        k('v_lshl_add_u32 v37, v35, 3, v37')
        k('v_bfe_u32 v38, v36, 3, 4')
        k('v_lshlrev_b32 v38, 1, v38')
        k(f'v_lshl_add_u32 v{d}, v37, 5, v38')
        k(f'v_add_u32 v{d}, {KC}, v{d}')
    k(f'v_mov_b32 v34, {KC + 47 * 32}')
    k('v_cmp_eq_u32 vcc, 255, v0')
    k('v_cndmask_b32 v32, v32, v34, vcc')
    k('v_mov_b32 v34, 0')
    k('v_lshlrev_b32 v35, 2, v0')
    k(f'v_add_u32 v36, {UB}, v35')
    k('v_cmp_gt_u32 vcc, 120, v0')
    k('s_and_saveexec_b64 s[54:55], vcc')
    k('ds_write_b32 v36, v34')
    k('ds_write_b32 v36, v34 offset:4608')
    k('s_mov_b64 exec, s[54:55]')
    k(f'v_add_u32 v36, {KE + 4096}, v35')
    k('v_cmp_gt_u32 vcc, 16, v0')
    k('s_and_saveexec_b64 s[54:55], vcc')
    for o in (0, 4160, 8320, 8320 + 4160):
        k(f'ds_write_b32 v36, v34 offset:{o}')
    k('s_mov_b64 exec, s[54:55]')
    k('v_lshrrev_b32 v42, 7, v0')
    k('v_and_b32 v43, 127, v0')
    k('v_lshlrev_b32 v43, 2, v43')
    k(f'v_mul_u32_u24 v40, {48 * 528}, v42')
    k('v_add_u32 v40, v40, v43')
    k(f'v_mul_u32_u24 v41, {16 * 528}, v42')
    k('v_add_u32 v41, v41, v43')
    k(f'v_add_u32 v41, {TF}, v41')
    k('s_waitcnt lgkmcnt(0)')
    k('v_lshlrev_b32 v42, 4, v42')
    k('v_lshrrev_b32 v44, v42, s22')
    k('v_lshlrev_b32 v44, 16, v44')
    k(f'v_mul_f32 v44, {hex(LOG2E)}, v44')
    k('v_exp_f32 v44, v44')
    bf16round(k, 44, 'v44')
    st_()
    k('s_waitcnt vmcnt(10)')
    st_()
    for i in range(4):
        k(f'v_lshlrev_b32 v{4 + i}, 16, v{4 + i}')
    k(f'v_mul_f32 v4, {hex(LOG2E)}, v4')
    k('v_exp_f32 v4, v4')
    bf16round(k, 4, 'v4')
    k('v_mul_f32 v4, v4, v44')
    k(f'v_mul_f32 v4, {hex(LOG2E | 0x80000000)}, v4')
    k('v_mul_f32 v5, v5, v44')
    k(f'v_mul_f32 v5, {hex(INV2PI)}, v5')
    k('v_add_f32 v44, v44, v44')
    F, W1, W8, W128, T0, T1, T2 = 46, 48, 50, 52, 54, 56, 58
    k(f'v_mul_f32 v{F}, v6, v44')
    k(f'v_mul_f32_e64 v{F + 1}, -v7, v44')
    for d, p, conj in ((W1, 1.0, 0), (W8, 8.0, 1), (W128, 128.0, 0)):
        import struct
        lit = hex(struct.unpack('<I', struct.pack('<f', p))[0])
        k(f'v_mul_f32 v60, {lit}, v4')
        k(f'v_mul_f32 v61, {lit}, v5')
        k('v_exp_f32 v60, v60')
        k('v_fract_f32 v61, v61')
        k(f'v_cos_f32 v{d}, v61')
        k(f'v_sin_f32 v{d + 1}, v61')
        k(f'v_mul_f32 v{d}, v{d}, v60')
        k(f'v_mul_f32_e64 v{d + 1}, {"-" if conj else ""}v{d + 1}, v60')
    E = 64
    Q = 80
    P = 82
    pk = [84, 85, 86, 87]
    cnt = [0]

    def put(tab, row, src):
        r = pk[cnt[0] % 4]
        cnt[0] += 1
        k(f'v_cvt_pk_bf16_f32 v{r}, v{src}, v{src + 1}')
        k(f'ds_write_b32 v{40 if tab == "A" else 41}, v{r} offset:{row * 528}')

    k(f'v_mov_b32 v{E}, 1.0')
    k(f'v_mov_b32 v{E + 1}, 0')
    k(f'v_mov_b32 v{E + 2}, v{W1}')
    k(f'v_mov_b32 v{E + 3}, v{W1 + 1}')
    k(f'v_mov_b32 v{Q}, v{W128}')
    k(f'v_mov_b32 v{Q + 1}, v{W128 + 1}')
    put('A', 0, E)
    put('A', 1, E + 2)
    put('F', 0, F)
    fj = 0

    def fstep():
        nonlocal fj
        if fj < 15:
            fj += 1
            cmul(k, F, F, W8, T1)
            put('F', fj, F)

    for r in range(2, 8):
        cmul(k, E + 2 * r, E + 2 * (r - 1), W1, T0)
        fstep()
        put('A', r, E + 2 * r)
    for i in range(1, 17):
        o = 0 if i < 2 else 1 if i < 4 else 2 if i < 8 else 3
        row0 = 8 * o + ((8 * i) >> o)
        put('A', row0, Q)
        for idx, r in enumerate(range(0, 8, 1 << o)):
            if r == 0:
                continue
            cmul(k, P, Q, E + 2 * r, T2)
            put('A', row0 + idx, P)
        if i < 16:
            cmul(k, Q, Q, W128, T0)
        if i >= 7:
            fstep()
    assert fj == 15
    st_()
    k('s_waitcnt vmcnt(0)')
    st_()
    X0, X1, MU, RS = 44, 52, 60, 68
    for e in range(8):
        k(f'v_and_b32 v{RS + e}, 0xffff0000, v{16 + e}')
        k(f'v_rcp_f32 v{RS + e}, v{RS + e}')
        k(f'v_lshlrev_b32 v{MU + e}, 16, v{16 + e}')
        k(f'v_lshlrev_b32 v{X0 + e}, 16, v{8 + e}')
        k(f'v_and_b32 v{X1 + e}, 0xffff0000, v{8 + e}')
    k('s_lshl_b32 s56, s23, 16')
    k('s_and_b32 s58, s23, 0xffff0000')
    k('v_lshlrev_b32 v92, 4, v0')
    k(f'v_add_u32 v92, {UB + 480}, v92')
    k(f'v_add_u32 v93, {ZB}, v3')
    for ch, X in ((0, X0), (1, X1)):
        U = 76
        for e in range(0, 8, 2):
            k(f'v_pk_add_f32 v[{U + e}:{U + e + 1}], v[{X + e}:{X + e + 1}], v[{MU + e}:{MU + e + 1}] neg_lo:[0,1] neg_hi:[0,1]')
            k(f'v_pk_mul_f32 v[{U + e}:{U + e + 1}], v[{U + e}:{U + e + 1}], v[{RS + e}:{RS + e + 1}]')
            k(f'v_pk_fma_f32 v[{X + e}:{X + e + 1}], v[{U + e}:{U + e + 1}], s[{56 + 2 * ch}:{57 + 2 * ch}], v[{X + e}:{X + e + 1}] op_sel_hi:[1,0,1]')
            k(f'v_cvt_pk_bf16_f32 v{84 + 4 * ch + e // 2}, v{U + e}, v{U + e + 1}')
        k(f'ds_write_b128 v92, v[{84 + 4 * ch}:{87 + 4 * ch}] offset:{4608 * ch}')
        k(f'ds_write_b128 v93, v[{X}:{X + 3}] offset:{8192 * ch}')
        k(f'ds_write_b128 v93, v[{X + 4}:{X + 7}] offset:{8192 * ch + 16}')
    k('v_and_b32 v4, 15, v0')
    k('v_bfe_u32 v5, v0, 4, 2')
    k('v_lshrrev_b32 v6, 6, v0')
    k('v_readfirstlane_b32 s60, v6')
    k('s_lshr_b32 s61, s60, 1')
    k('s_and_b32 s62, s60, 1')
    k('v_and_b32 v6, 1, v5')
    k('v_lshrrev_b32 v7, 1, v5')
    k('v_lshlrev_b32 v6, 8, v6')
    k('v_lshl_add_u32 v6, v7, 7, v6')
    k('v_mul_u32_u24 v7, 528, v4')
    k('v_add_u32 v6, v6, v7')
    k(f's_mul_i32 s63, s61, {16 * 528}')
    k(f's_add_u32 s63, s63, {TF}')
    k('v_add_u32 v8, s63, v6')
    k(f's_mul_i32 s63, s61, {48 * 528}')
    k(f's_mul_i32 s64, s62, {32 * 528}')
    k('s_add_u32 s63, s63, s64')
    k('v_add_u32 v9, s63, v6')
    k('v_lshlrev_b32 v10, 5, v4')
    k('v_lshl_add_u32 v10, v5, 3, v10')
    k(f's_mul_i32 s63, s61, {KC_CH}')
    k('s_lshl_b32 s64, s62, 10')
    k('s_add_u32 s63, s63, s64')
    k(f's_add_u32 s63, s63, {KC}')
    k('v_add_u32 v10, s63, v10')
    k('s_waitcnt lgkmcnt(0)')
    k('s_barrier')
    st_()
    FA, EB0, EB1, AC = 44, 76, 108, 36
    for st in range(8):
        k(f'ds_read_b128 v[{FA + 4 * st}:{FA + 4 * st + 3}], v8 offset:{16 * st}')
        k(f'ds_read_b128 v[{EB0 + 4 * st}:{EB0 + 4 * st + 3}], v9 offset:{16 * st}')
        if st % 4 == 3:
            k('s_waitcnt lgkmcnt(0)')
            for q in range(st - 3, st + 1):
                k(f'v_mfma_f32_16x16x32_bf16 v[{AC}:{AC + 3}], v[{FA + 4 * q}:{FA + 4 * q + 3}], v[{EB0 + 4 * q}:{EB0 + 4 * q + 3}], {"0" if q == 0 else v(AC, 4)}')
    k('s_cmp_eq_u32 s62, 1')
    k('s_cbranch_scc1 B_kc1')
    for st in range(8):
        k(f'ds_read_b128 v[{EB1 + 4 * st}:{EB1 + 4 * st + 3}], v9 offset:{16 * 528 + 16 * st}')
    k('s_waitcnt lgkmcnt(0)')
    for q in range(8):
        k(f'v_mfma_f32_16x16x32_bf16 v[{AC + 4}:{AC + 7}], v[{FA + 4 * q}:{FA + 4 * q + 3}], v[{EB1 + 4 * q}:{EB1 + 4 * q + 3}], {"0" if q == 0 else v(AC + 4, 4)}')
    k(f'v_cvt_pk_bf16_f32 v12, v{AC + 4}, v{AC + 5}')
    k(f'v_cvt_pk_bf16_f32 v13, v{AC + 6}, v{AC + 7}')
    k('ds_write_b64 v10, v[12:13] offset:512')
    k('B_kc1:')
    k(f'v_cvt_pk_bf16_f32 v14, v{AC}, v{AC + 1}')
    k(f'v_cvt_pk_bf16_f32 v15, v{AC + 2}, v{AC + 3}')
    k('v_lshl_add_u32 v16, s62, 4, v4')
    k('v_cmp_eq_u32 vcc, 31, v16')
    k('v_cndmask_b32 v14, v14, v34, vcc')
    k('ds_write_b64 v10, v[14:15]')
    k('s_waitcnt lgkmcnt(0)')
    k('s_barrier')
    st_()
    k('v_lshlrev_b32 v11, 4, v0')
    k(f'v_add_u32 v11, {KE}, v11')
    for ch in range(2):
        G = 44 + 10 * ch
        for e in range(9):
            k(f'ds_read_u16 v{G + e}, v{24 + e} offset:{ch * KC_CH}')
        if ch == 0:
            continue
    for ch in range(2):
        G = 44 + 10 * ch
        k(f's_waitcnt lgkmcnt({9 if ch == 0 else 2})')
        O = 64 + 8 * ch
        for q in range(4):
            k(f'v_lshl_or_b32 v{O + q}, v{G + 2 * q + 1}, 16, v{G + 2 * q}')
            k(f'v_lshl_or_b32 v{O + 4 + q}, v{G + 2 * q + 2}, 16, v{G + 2 * q + 1}')
        k(f'ds_write_b128 v11, v[{O}:{O + 3}] offset:{8320 * ch}')
        k(f'ds_write_b128 v11, v[{O + 4}:{O + 7}] offset:{8320 * ch + 4160}')
    k('v_sub_u32 v12, 1807, v4')
    k('v_lshrrev_b32 v12, 1, v12')
    k('v_lshl_add_u32 v12, v5, 2, v12')
    k('v_lshlrev_b32 v12, 2, v12')
    k('v_and_b32 v13, 1, v4')
    k('v_xor_b32 v13, 1, v13')
    k('v_mul_u32_u24 v13, 4160, v13')
    k('v_add_u32 v12, v12, v13')
    k('s_mul_i32 s63, s61, 8320')
    k('s_lshl_b32 s64, s62, 8')
    k('s_add_u32 s63, s63, s64')
    k(f's_add_u32 s63, s63, {KE - 512}')
    k('v_add_u32 v12, s63, v12')
    for q in range(1, 4):
        k(f'v_subrev_u32 v{12 + q}, {1024 * q}, v12')
    k('v_lshlrev_b32 v16, 5, v4')
    k('v_lshl_add_u32 v16, v5, 4, v16')
    k('s_mul_i32 s63, s61, 4608')
    k('s_add_u32 s63, s63, s64')
    k(f's_add_u32 s63, s63, {UB}')
    k('v_add_u32 v16, s63, v16')
    k('v_lshlrev_b32 v17, 6, v4')
    k('v_lshl_add_u32 v17, v5, 4, v17')
    k('s_lshl_b32 s63, s61, 13')
    k('s_lshl_b32 s64, s62, 12')
    k('s_add_u32 s63, s63, s64')
    k(f's_add_u32 s63, s63, {ZB}')
    k('v_add_u32 v17, s63, v17')
    ZR = 20
    for t in range(4):
        k(f'ds_read_b128 v[{ZR + 4 * t}:{ZR + 4 * t + 3}], v17 offset:{1024 * t}')
    k('s_waitcnt lgkmcnt(0)')
    k('s_barrier')
    st_()
    ACC = 36
    AF = [68, 132]
    BF = [100, 164]

    def reads(c):
        out = []
        b = c & 1
        for d in range(8):
            off = (128 if d % 2 == 0 else 0) + 16 * c
            r = AF[b] + 4 * d
            out.append(f'ds_read2_b32 v[{r}:{r + 1}], v{12 + d // 2} offset0:{off} offset1:{off + 1}')
            out.append(f'ds_read2_b32 v[{r + 2}:{r + 3}], v{12 + d // 2} offset0:{off + 2} offset1:{off + 3}')
            r = BF[b] + 4 * d
            out.append(f'ds_read_b128 v[{r}:{r + 3}], v16 offset:{512 * d + 64 * c}')
        return out

    started = set()

    def mf(c, d, s_):
        t = d + s_
        b = c & 1
        acc = v(ACC + 4 * t, 4)
        src = acc if t in started else '0'
        started.add(t)
        return f'v_mfma_f32_16x16x32_bf16 {acc}, {v(AF[b] + 4 * d, 4)}, {v(BF[b] + 4 * s_, 4)}, {src}'

    r0 = reads(0)
    order = [[(d, s_) for d in range(lv + 1) for s_ in range(lv + 1) if max(d, s_) == lv and d + s_ < 8] for lv in range(8)]
    for x in r0[:12]:
        k(x)
    r1 = reads(1)
    pend = r0[12:] + r1
    issued = 12
    for lv in range(8):
        needn = 3 * (lv + 1)
        k(f's_waitcnt lgkmcnt({min(issued - needn, 15)})')
        for i, (d, s_) in enumerate(order[lv]):
            k(mf(0, d, s_))
            if pend and issued - needn < 14:
                k(pend.pop(0))
                issued += 1
    for x in pend:
        k(x)
    for c in range(1, 4):
        k('s_waitcnt lgkmcnt(0)')
        pend = reads(c + 1) if c < 3 else []
        for lv in range(8):
            for (d, s_) in order[lv]:
                k(mf(c, d, s_))
                if pend:
                    k(pend.pop(0))
    st_()
    k('v_and_b32 v18, 63, v0')
    k('v_lshlrev_b32 v18, 4, v18')
    k('s_lshl_b32 s63, s60, 12')
    k('v_add_u32 v19, s63, v18')
    k('s_xor_b32 s63, s63, 4096')
    k('v_add_u32 v18, s63, v18')
    k('s_cmp_eq_u32 s62, 1')
    k('s_cbranch_scc1 B_x1')
    for t in range(4):
        k(f'ds_write_b128 v19, {v(ACC + 16 + 4 * t, 4)} offset:{RED + 1024 * t}')
    for i in range(0, 16, 2):
        k(f'v_pk_add_f32 {v(ZR + i, 2)}, {v(ZR + i, 2)}, {v(ACC + i, 2)}')
    k('s_branch B_x2')
    k('B_x1:')
    for t in range(4):
        k(f'ds_write_b128 v19, {v(ACC + 4 * t, 4)} offset:{RED + 1024 * t}')
    for i in range(0, 16, 2):
        k(f'v_pk_add_f32 {v(ZR + i, 2)}, {v(ZR + i, 2)}, {v(ACC + 16 + i, 2)}')
    k('B_x2:')
    k('s_waitcnt lgkmcnt(0)')
    k('s_barrier')
    for t in range(4):
        k(f'ds_read_b128 {v(68 + 4 * t, 4)}, v18 offset:{RED + 1024 * t}')
    st_()
    k('v_lshrrev_b32 v6, 1, v4')
    k('v_lshlrev_b32 v6, 15, v6')
    k('v_and_b32 v7, 1, v4')
    k('v_lshl_add_u32 v6, v7, 5, v6')
    k('v_lshl_add_u32 v6, v5, 3, v6')
    k('s_lshl_b32 s63, s3, 7')
    k('s_lshl_b32 s64, s61, 6')
    k('s_add_u32 s63, s63, s64')
    k('s_lshl_b32 s64, s62, 20')
    k('s_add_u32 s63, s63, s64')
    for t in range(4):
        k(f's_waitcnt lgkmcnt({3 - t})')
        for i in (0, 2):
            k(f'v_pk_add_f32 {v(ZR + 4 * t + i, 2)}, {v(ZR + 4 * t + i, 2)}, {v(68 + 4 * t + i, 2)}')
        k(f'v_cvt_pk_bf16_f32 v{84 + 2 * t}, v{ZR + 4 * t}, v{ZR + 4 * t + 1}')
        k(f'v_cvt_pk_bf16_f32 v{85 + 2 * t}, v{ZR + 4 * t + 2}, v{ZR + 4 * t + 3}')
        k(f'buffer_store_dwordx2 {v(84 + 2 * t, 2)}, v6, s[48:51], s63 offen')
        if t < 3:
            k(f's_add_u32 s63, s63, {8 * 32768}')
    k('B_end:')
    st_.finish()
    k('B_exit:')
    k('s_endpgm')
    k.fix()
    return kernel_text('conv_kernel', k.text(), 256 if DIAG else 200, 100 if DIAG else 72)


ST = 41024
GOFF, UOFF = 16384, 16384 + 12288 + 32
C_LDS = 3 * ST + 1024
XCH = 3 * ST


def kern_c():
    k = Asm()
    k('s_cmp_ge_u32 s2, 240')
    k('s_cbranch_scc1 C_exit')
    st_ = Stamps(k, 2)
    k(f's_load_dwordx4 s[4:7], s[0:1], {W_G}')
    k(f's_load_dwordx2 s[8:9], s[0:1], {D_WS}')
    k('s_and_b32 s3, s2, 7')
    k('s_lshr_b32 s10, s2, 3')
    k('s_lshl_b32 s3, s3, 1')
    k('s_and_b32 s11, s10, 1')
    k('s_add_u32 s3, s3, s11')
    k('s_lshr_b32 s10, s10, 1')
    k('v_lshrrev_b32 v1, 6, v0')
    k('v_readfirstlane_b32 s11, v1')
    k('v_and_b32 v1, 63, v0')
    k('v_lshlrev_b32 v2, 4, v1')
    for j in range(3):
        k(f'v_add_u32 v6, {64 * j}, v1')
        k('v_mul_u32_u24 v7, 5462, v6')
        k('v_lshrrev_b32 v7, 16, v7')
        k('v_mul_u32_u24 v8, 12, v7')
        k('v_sub_u32 v8, v6, v8')
        k('v_mul_u32_u24 v7, 2752, v7')
        k('v_lshl_add_u32 v7, v8, 4, v7')
        k(f'v_subrev_u32 v{3 + j}, {1024 * j}, v7')
    k('s_waitcnt lgkmcnt(0)')
    srd(k, 12, 4, 512 * 2752)
    srd(k, 16, 6, 512 * 2752)
    srd(k, 20, 8, 0x200000, WS_HT)
    srd(k, 24, 8, H_BYTES, WS_H)
    srd(k, 28, 8, 86 * 128, WS_SFR)
    k('s_lshl_b32 s32, s3, 2')
    k('s_add_u32 s32, s32, s11')
    k('s_lshl_b32 s32, s32, 15')
    k(f's_mul_i32 s33, s11, {16 * 2752}')
    k('s_mul_i32 s34, s10, 192')
    k('s_add_u32 s33, s33, s34')
    k('s_lshl_b32 s34, s11, 12')
    k('s_mul_i32 s35, s11, 3072')

    def dma(c):
        st = (c % 3) * ST
        out = []
        out.append([f's_add_u32 m0, s34, {st}'] + ['buffer_load_dwordx4 v2, s[20:23], s32 offen lds'])
        for j in range(1, 4):
            out.append([f'buffer_load_dwordx4 v2, s[20:23], s32 offen offset:{1024 * j} lds'])
        for off, sr in ((GOFF, 12), (UOFF, 16)):
            for j in range(3):
                x = [f's_add_u32 m0, s35, {st + off}'] if j == 0 else []
                x.append(f'buffer_load_dwordx4 v{3 + j}, s[{sr}:{sr + 3}], s33 offen offset:{1024 * j} lds')
                out.append(x)
        out[-1] += ['s_add_u32 s32, s32, 4096', f's_add_u32 s33, s33, {64 * 2752}']
        return out

    for c in range(3):
        for x in dma(c):
            k('\n'.join(x))
    k('s_lshr_b32 s36, s11, 1')
    k('s_and_b32 s37, s11, 1')
    k('s_mul_i32 s38, s10, 6')
    k('s_mul_i32 s39, s37, 3')
    k('s_add_u32 s38, s38, s39')
    k('s_lshl_b32 s39, s38, 7')
    k('v_lshlrev_b32 v6, 2, v1')
    k('v_mov_b32 v7, 0x7fffffff')
    k('v_cmp_gt_u32 vcc, 32, v1')
    k('v_cndmask_b32 v6, v7, v6, vcc')
    SF = 20
    for u in range(3):
        k(f'buffer_load_dword v{SF + 4 * u}, v6, s[28:31], s39 offen offset:{128 * u}')
        for i in range(1, 4):
            k(f'v_mov_b32 v{SF + 4 * u + i}, 0')
    k('v_lshrrev_b32 v6, 5, v1')
    k('v_bfe_u32 v7, v1, 2, 2')
    k('v_lshl_add_u32 v6, v6, 3, v7')
    k('v_bfe_u32 v7, v1, 4, 1')
    k('v_and_b32 v8, 3, v1')
    k('v_lshlrev_b32 v9, 6, v6')
    k('v_lshl_add_u32 v9, v7, 5, v9')
    k('v_lshl_add_u32 v9, v8, 3, v9')
    k('s_lshl_b32 s40, s36, 13')
    k('s_lshl_b32 s41, s37, 12')
    k('s_add_u32 s40, s40, s41')
    k('v_add_u32 v10, s40, v9')
    k('v_xor_b32 v13, 4096, v10')
    k('v_lshlrev_b32 v9, 1, v8')
    k('v_lshrrev_b32 v8, 1, v8')
    k('v_or_b32 v8, v8, v9')
    k('v_and_b32 v8, 3, v8')
    k('v_mul_u32_u24 v9, 192, v6')
    k('v_lshl_add_u32 v9, v8, 3, v9')
    k(f'v_mul_u32_u24 v7, {UOFF - GOFF}, v7')
    k('v_add_u32 v9, v9, v7')
    k('s_mul_i32 s40, s37, 96')
    k(f's_add_u32 s40, s40, {GOFF}')
    k('v_add_u32 v16, s40, v9')
    for b in (10, 13, 16):
        for st in (1, 2):
            k(f'v_add_u32 v{b + st}, {st * ST}, v{b}')
    S1, S2 = 32, 33
    k(f'v_mov_b32 v{S1}, 0')
    k(f'v_mov_b32 v{S2}, 0')
    k('s_mov_b32 s42, 0x3f803f80')
    FR = [36, 56]
    ACC = 76

    def reads(c, ks):
        st = c % 3
        b = FR[ks & 1]
        out = []
        for nm in ('B0', 'A0', 'B1', 'A1', 'A2'):
            idx = int(nm[1])
            for e in range(2):
                if nm[0] == 'A':
                    r = b + 4 * idx + 2 * e
                    out.append(f'ds_read_b64_tr_b16 {v(r, 2)}, v{16 + st} offset:{ks * 3072 + e * 768 + idx * 32}')
                else:
                    r = b + 12 + 4 * idx + 2 * e
                    out.append(f'ds_read_b64_tr_b16 {v(r, 2)}, v{10 + 3 * idx + st} offset:{ks * 1024 + e * 256}')
        return out

    st_()
    k('s_waitcnt vmcnt(23)')
    k('s_barrier')
    st_()
    for x in reads(0, 0):
        k(x)
    for c in range(8):
        for ks in range(4):
            b = FR[ks & 1]
            k('s_waitcnt lgkmcnt(0)')
            fill = []
            if ks < 3:
                fill = [[x] for x in reads(c, ks + 1)]
            elif c < 7:
                n = 0
                if c + 2 <= 7:
                    n += 10
                if c == 0:
                    n += 3
                k(f's_waitcnt vmcnt({n})')
                k('s_barrier')
                st_()
                fill = [[x] for x in reads(c + 1, 0)]
                if c + 3 <= 7:
                    fill += dma(c + 3)
            dots = []
            for i in range(4):
                dots.append([f'v_dot2c_f32_bf16 v{S1}, s42, v{b + 12 + i}'])
                dots.append([f'v_dot2c_f32_bf16 v{S2}, v{b + 12 + i}, v{b + 12 + i}'])
            fill = fill + dots
            per = -(-len(fill) // 6)
            for u in range(3):
                for i in range(2):
                    acc = v(ACC + 16 * (2 * u + i), 16)
                    src = '0' if (c == 0 and ks == 0) else acc
                    k(f'v_mfma_f32_32x32x16_bf16 {acc}, {v(b + 4 * u, 4)}, {v(b + 12 + 4 * i, 4)}, {src}')
                    for x in fill[:per]:
                        k('\n'.join(x))
                    fill = fill[per:]
    st_()
    for r in (S1, S2):
        k(f'v_mov_b32 v34, v{r}')
        k(f'v_permlane32_swap_b32 v{r}, v34')
        k(f'v_add_f32 v{r}, v{r}, v34')
        k(f'v_mul_f32 v{r}, 0x3b000000, v{r}')
    k(f'v_fma_f32 v{S2}, -v{S1}, v{S1}, v{S2}')
    k(f'v_max_f32 v{S2}, 0, v{S2}')
    bf16round(k, S2, f'v{S2}')
    k(f'v_add_f32 v{S2}, 0x3727c5ac, v{S2}')
    bf16round(k, S2, f'v{S2}')
    k(f'v_sqrt_f32 v{S2}, v{S2}')
    k(f'v_cvt_pk_bf16_f32 v34, -v{S1}, v{S2}')
    k('v_lshlrev_b32 v6, 2, v1')
    k('s_lshl_b32 s40, s11, 8')
    k(f's_add_u32 s40, s40, {XCH}')
    k('v_add_u32 v7, s40, v6')
    k('s_xor_b32 s41, s11, 1')
    k('s_lshl_b32 s41, s41, 8')
    k(f's_add_u32 s41, s41, {XCH}')
    k('v_add_u32 v6, s41, v6')
    k('ds_write_b32 v7, v34')
    k('s_waitcnt lgkmcnt(0)')
    k('s_barrier')
    k('ds_read_b32 v35, v6')
    k('s_mov_b32 s43, 0x01000100')
    MB = 36
    for i in range(2):
        for j in range(1, 4):
            k(f'v_mov_b32 v{MB + 4 * i + j}, 0')
    k('s_waitcnt lgkmcnt(0)')
    SG, CR = 44, 48
    for i in range(2):
        k(f'v_perm_b32 v{MB + 4 * i}, v{34 + i}, v{34 + i}, s43')
        k(f'v_and_b32 v{SG + 2 * i}, 0xffff0000, v{34 + i}')
        k(f'v_rcp_f32 v{CR + 2 * i}, v{SG + 2 * i}')
        k(f'v_mul_f32 v{CR + 2 * i}, {hex(LOG2E | 0x80000000)}, v{CR + 2 * i}')
    for u in range(3):
        for i in range(2):
            acc = v(ACC + 16 * (2 * u + i), 16)
            k(f'v_mfma_f32_32x32x16_bf16 {acc}, {v(SF + 4 * u, 4)}, {v(MB + 4 * i, 4)}, {acc}')
    st_()
    k('s_lshl_b32 s40, s3, 2')
    k('s_lshl_b32 s41, s36, 1')
    k('s_add_u32 s40, s40, s41')
    k('s_add_u32 s40, s40, s37')
    k('s_xor_b32 s41, s40, 1')
    for r in (40, 41):
        k(f's_mul_i32 s{r}, s{r}, 86')
        k(f's_add_u32 s{r}, s{r}, s38')
        k(f's_lshl_b32 s{r}, s{r}, 10')
    for u in range(3):
        k(f's_add_u32 s44, s38, {u}')
        k('s_cmp_ge_u32 s44, 86')
        k('s_cbranch_scc1 C_end')
        for i in range(2):
            b = ACC + 16 * (2 * u + i)
            for j in range(0, 8, 2):
                k(f'v_pk_mul_f32 {v(b + j, 2)}, {v(b + j, 2)}, {v(CR + 2 * i, 2)} op_sel_hi:[1,0]')
            for j in range(8):
                k(f'v_exp_f32 v{b + j}, v{b + j}')
            for j in range(0, 8, 2):
                k(f'v_pk_fma_f32 {v(b + j, 2)}, {v(b + j, 2)}, {v(SG + 2 * i, 2)}, {v(SG + 2 * i, 2)} op_sel_hi:[1,0,0]')
            for j in range(8):
                k(f'v_rcp_f32 v{b + j}, v{b + j}')
            for j in range(0, 8, 2):
                k(f'v_pk_mul_f32 {v(b + j, 2)}, {v(b + j, 2)}, {v(b + 8 + j, 2)}')
            for j in range(4):
                k(f'v_cvt_pk_bf16_f32 v{b + 8 + j}, v{b + 2 * j}, v{b + 2 * j + 1}')
            k(f'buffer_store_dwordx4 {v(b + 8, 4)}, v2, s[24:27], s{40 + i} offen offset:{1024 * u}')
    k('C_end:')
    st_.finish()
    k('C_exit:')
    k('s_endpgm')
    k.fix()
    return kernel_text('gemm1_kernel', k.text(), 256 if DIAG else 172, 100 if DIAG else 64)


D_LDS = 4 * 32768
NS = 22
RING = 15


def kern_d():
    k = Asm()
    k('s_cmp_ge_u32 s2, 256')
    k('s_cbranch_scc1 D_exit')
    st_ = Stamps(k, 3)
    k(f's_load_dwordx4 s[4:7], s[0:1], {W_D}')
    k(f's_load_dwordx2 s[8:9], s[0:1], {D_WS}')
    k('s_and_b32 s3, s2, 7')
    k('s_lshr_b32 s10, s2, 3')
    k('s_lshl_b32 s3, s3, 2')
    k('s_and_b32 s11, s10, 3')
    k('s_add_u32 s3, s3, s11')
    k('s_lshr_b32 s10, s10, 2')
    k('v_lshrrev_b32 v1, 6, v0')
    k('v_readfirstlane_b32 s11, v1')
    k('v_and_b32 v1, 63, v0')
    k('v_lshlrev_b32 v2, 4, v1')
    k('v_lshrrev_b32 v4, 3, v1')
    k('v_and_b32 v5, 7, v1')
    k('v_bfe_u32 v6, v1, 4, 1')
    k('v_lshlrev_b32 v6, 2, v6')
    k('v_xor_b32 v5, v5, v6')
    k('v_lshlrev_b32 v4, 10, v4')
    k('v_lshl_add_u32 v4, v5, 4, v4')
    k(f'v_add_u32 v5, {8192 - 1024}, v4')
    k('s_waitcnt lgkmcnt(0)')
    srd(k, 12, 4, 1376 * 1024)
    srd(k, 16, 6, 2048 * 1024)
    srd(k, 20, 8, 0x200000, WS_HT)
    srd(k, 24, 8, H_BYTES, WS_H)
    k('s_and_b32 s28, s11, 1')
    k('s_lshr_b32 s29, s11, 1')
    k(f's_mul_i32 s30, s11, {NS}')
    k('s_lshl_b32 s31, s30, 14')
    k('s_lshl_b32 s32, s10, 7')
    k('s_add_u32 s31, s31, s32')
    k('s_lshl_b32 s33, s3, 1')
    k('s_add_u32 s33, s33, s29')
    k('s_xor_b32 s34, s33, 1')
    for r, d in ((33, 35), (34, 36)):
        k(f's_mul_i32 s{d}, s{r}, 86')
        k(f's_add_u32 s{d}, s{d}, s30')
        k(f's_lshl_b32 s{d}, s{d}, 10')
    k('s_lshl_b32 s37, s11, 15')
    k('s_cmp_eq_u32 s11, 3')
    k('s_cselect_b32 s38, 0x7fffffff, 0')
    k('v_or_b32 v3, s38, v2')
    HB = 112
    ACC = 48

    def loads(j):
        sl = j % 16
        vo = 'v2' if j < 20 else 'v3'
        return [f's_add_u32 m0, s37, {sl * 2048}',
                'buffer_load_dwordx4 v4, s[12:15], s31 offen lds',
                'buffer_load_dwordx4 v5, s[12:15], s31 offen offset:1024 lds',
                f'buffer_load_dwordx4 {v(HB + 8 * sl, 4)}, {vo}, s[24:27], s35 offen',
                f'buffer_load_dwordx4 {v(HB + 8 * sl + 4, 4)}, {vo}, s[24:27], s36 offen',
                's_add_u32 s31, s31, 16384', 's_add_u32 s35, s35, 1024', 's_add_u32 s36, s36, 1024']

    AHEAD = 11
    for j in range(AHEAD):
        for x in loads(j):
            k(x)
    k('v_and_b32 v6, 31, v1')
    k('v_lshrrev_b32 v7, 5, v1')
    k('v_lshlrev_b32 v8, 1, v6')
    k('v_lshl_add_u32 v8, v7, 10, v8')
    k('s_lshl_b32 s39, s33, 15')
    k('s_lshl_b32 s40, s10, 12')
    k('s_add_u32 s39, s39, s40')
    k('s_lshl_b32 s40, s28, 11')
    k('s_add_u32 s39, s39, s40')
    RES = 16
    for j in range(16):
        k(f'buffer_load_ushort v{RES + j}, v8, s[20:23], s39 offen offset:{64 * j}')
    k('v_lshlrev_b32 v9, 10, v6')
    k('v_lshl_add_u32 v9, v7, 5, v9')
    k('s_lshl_b32 s41, s33, 15')
    k('s_lshl_b32 s40, s10, 7')
    k('s_add_u32 s41, s41, s40')
    k('s_lshl_b32 s40, s28, 6')
    k('s_add_u32 s41, s41, s40')
    k('v_bfe_u32 v6, v1, 2, 2')
    k('v_lshl_add_u32 v7, v7, 3, v6')
    k('v_lshlrev_b32 v10, 7, v7')
    k('v_lshrrev_b32 v6, 1, v6')
    k('v_xor_b32 v6, s28, v6')
    k('v_lshl_add_u32 v10, v6, 6, v10')
    k('v_and_b32 v6, 1, v1')
    k('v_bfe_u32 v7, v1, 1, 1')
    k('v_bfe_u32 v11, v1, 4, 1')
    k('v_lshl_add_u32 v7, v11, 1, v7')
    k('v_lshl_add_u32 v6, v6, 2, v7')
    k('v_lshl_add_u32 v10, v6, 3, v10')
    k('v_add_u32 v10, s37, v10')
    k('v_xor_b32 v11, 64, v10')
    AF = [32, 40]

    def reads(j):
        sl = j % 16
        b = AF[j & 1]
        return [f'ds_read_b64_tr_b16 {v(b + 4 * a_ + 2 * e, 2)}, v{10 + a_} offset:{sl * 2048 + e * 512}'
                for a_ in range(2) for e in range(2)]

    seq = []
    for j in range(AHEAD):
        seq += [('s', j)] * 4
    seq += [('r', 0)] * 16

    def wait_for(tag):
        last = max(i for i, x in enumerate(seq) if x == tag)
        k(f's_waitcnt vmcnt({len(seq) - 1 - last})')

    st_()
    wait_for(('s', 0))
    st_()
    for x in reads(0):
        k(x)
    for j in range(NS):
        b = AF[j & 1]
        sl = j % 16
        if j in (5, 11, 16):
            st_()
        if j + 1 < NS:
            wait_for(('s', j + 1))
        k('s_waitcnt lgkmcnt(0)')
        fill = reads(j + 1) if j + 1 < NS else []
        if j + AHEAD < NS:
            fill += loads(j + AHEAD)
            seq += [('s', j + AHEAD)] * 4
        per = -(-len(fill) // 4)
        for a_ in range(2):
            for i in range(2):
                acc = v(ACC + 16 * (2 * i + a_), 16)
                src = '0' if j == 0 else acc
                k(f'v_mfma_f32_32x32x16_bf16 {acc}, {v(b + 4 * a_, 4)}, {v(HB + 8 * sl + 4 * i, 4)}, {src}')
                for x in fill[:per]:
                    k(x)
                fill = fill[per:]
    st_()
    k('s_barrier')
    for x in range(1, 4):
        k(f's_xor_b32 s40, s11, {x}')
        k('s_lshl_b32 s40, s40, 14')
        k(f's_add_u32 s40, s40, {4096 * x}')
        k(f'v_add_u32 v{11 + x}, s40, v2')
    for x in range(1, 4):
        for q in range(4):
            k(f'ds_write_b128 v{11 + x}, {v(ACC + 16 * x + 4 * q, 4)} offset:{1024 * q}')
    for j in range(16):
        k(f'v_lshlrev_b32 v{RES + j}, 16, v{RES + j}')
    for j in range(0, 16, 2):
        k(f'v_pk_add_f32 {v(ACC + j, 2)}, {v(ACC + j, 2)}, {v(RES + j, 2)}')
    k('s_lshl_b32 s40, s11, 14')
    k('v_add_u32 v15, s40, v2')
    k('s_waitcnt lgkmcnt(0)')
    k('s_barrier')
    for x in range(1, 4):
        for q in range(4):
            k(f'ds_read_b128 {v(HB + 16 * x + 4 * q, 4)}, v15 offset:{4096 * x + 1024 * q}')
    for x in range(1, 4):
        k(f's_waitcnt lgkmcnt({4 * (3 - x)})')
        for j in range(0, 16, 2):
            k(f'v_pk_add_f32 {v(ACC + j, 2)}, {v(ACC + j, 2)}, {v(HB + 16 * x + j, 2)}')
    st_()
    for j in range(8):
        k(f'v_cvt_pk_bf16_f32 v{RES + j}, v{ACC + 2 * j}, v{ACC + 2 * j + 1}')
    k(f'buffer_store_dwordx4 {v(RES, 4)}, v9, s[16:19], s41 offen')
    k(f'buffer_store_dwordx4 {v(RES + 4, 4)}, v9, s[16:19], s41 offen offset:16')
    k('D_end:')
    st_.finish()
    k('D_exit:')
    k('s_endpgm')
    k.fix()
    return kernel_text('gemm2_kernel', k.text(), 256 if DIAG else 240, 100 if DIAG else 64)


def main(path):
    launch = (f'; @launch kernel=stats_kernel grid=(256,1,1) block=(256,1,1) lds=256\n'
              f'; @launch kernel=conv_kernel grid=(256,1,1) block=(256,1,1) lds={B_LDS}\n'
              f'; @launch kernel=gemm1_kernel grid=(240,1,1) block=(256,1,1) lds={C_LDS}\n'
              f'; @launch kernel=gemm2_kernel grid=(256,1,1) block=(256,1,1) lds={D_LDS}\n')
    txt = HEADER + launch + '.amdgcn_target "amdgcn-amd-amdhsa--gfx950"\n' + kern_a() + kern_b() + kern_c() + kern_d()
    open(path, 'w').write(txt)


if __name__ == '__main__':
    if '--diag' in sys.argv:
        DIAG = True
        sys.argv.remove('--diag')
    main(sys.argv[1] if len(sys.argv) > 1 else 'cdna_kernels/' + NAME + '.s')
```

```python
import sys, struct
import v1
from v1 import (NAME, HEADER, A_U, A_LAR, A_AIM, A_CR, A_CI, A_LDT, A_DSK, W_G, W_U, W_D, D_OUT, D_DBG, D_WS,
                LOG2E, INV2PI, srd, bf16round, allreduce, cmul, Stamps)
from asmlib import *

WS_STAT = 0
WS_SFR = 0x4000
WS_ST2 = 0x8000
WS_FLG = 0xA000
WS_DIE = 0xB000
WS_HT = 0x100000
WS_H = 0x400000
WS_T = 0xA00000
H_BYTES = 64 * 86 * 1024
OPT = dict(t_st='', h_st='', npre=6, code=1, pages=1, wt=1, late=0)
for a_ in list(sys.argv):
    if '=' in a_:
        n_, x_ = a_.split('=')
        OPT[n_] = int(x_) if x_.isdigit() else x_.replace('+', ' ')
        sys.argv.remove(a_)


def f32(x):
    return hex(struct.unpack('<I', struct.pack('<f', x))[0])


def fin(name, k, vg, sg):
    k.fix()
    return kernel_text(name, k.text(), 256 if v1.DIAG else vg, 100 if v1.DIAG else sg)


def kern_a():
    k = Asm()
    k('s_cmp_ge_u32 s2, 256')
    k('s_cbranch_scc1 A_exit')
    st = Stamps(k, 0)
    k(f's_load_dwordx16 s[4:19], s[0:1], {A_U}')
    k(f's_load_dwordx4 s[20:23], s[0:1], {W_G}')
    k(f's_load_dwordx2 s[24:25], s[0:1], {W_D}')
    k(f's_load_dwordx2 s[26:27], s[0:1], {D_WS}')
    if OPT['code']:
        k('s_getpc_b64 s[50:51]')
        k('A_pc:')
        k('s_lshr_b32 s52, s2, 3')
        k('s_lshl_b32 s52, s52, 11')
        k('v_and_b32 v44, 15, v0')
        k('v_lshl_add_u32 v44, v44, 7, s52')
        k('v_min_u32 v44, code_end-A_pc-4, v44')
        k('v_cmp_gt_u32 vcc, 16, v0')
        k('s_and_saveexec_b64 s[54:55], vcc')
        k('s_cbranch_execz A_nocode')
        k('global_load_dword v45, v44, s[50:51]')
        k('A_nocode:')
        k('s_mov_b64 exec, s[54:55]')
    k('v_lshlrev_b32 v1, 2, v0')
    k('v_lshlrev_b32 v2, 5, v0')
    k('v_lshrrev_b32 v3, 6, v0')
    k('v_and_b32 v4, 63, v0')
    k('v_readfirstlane_b32 s28, v3')
    k('s_lshl_b32 s3, s2, 13')
    k('s_add_u32 s29, s3, 4096')
    k('s_and_b32 s30, s2, 7')
    k('s_lshl_b32 s30, s30, 5')
    k('s_lshr_b32 s31, s2, 3')
    k('s_add_u32 s30, s30, s31')
    k('s_lshl_b32 s30, s30, 9')
    k('s_mul_i32 s31, s2, 5504')
    k('v_lshlrev_b32 v5, 7, v4')
    k('v_add_u32 v6, s30, v5')
    k('v_add_u32 v5, s31, v5')
    k('s_mov_b32 s48, 0x3f803f80')
    k('s_waitcnt lgkmcnt(0)')
    srd(k, 32, 4, 2048 * 1024)
    for e in range(8):
        k(f'buffer_load_dword v{8 + e}, v1, s[32:35], s{3 if e < 4 else 29} offen offset:{(e & 3) * 1024}')
    srd(k, 36, 26, 0x200000, WS_T)
    srd(k, 40, 26, 0x10000)
    k('s_cmp_eq_u32 s28, 1')
    k('s_cselect_b64 s[44:45], s[8:9], s[6:7]')
    k('s_cselect_b64 s[46:47], s[22:23], s[20:21]')
    k('s_cmp_eq_u32 s28, 2')
    k('s_cselect_b64 s[44:45], s[10:11], s[44:45]')
    k('s_cselect_b64 s[46:47], s[24:25], s[46:47]')
    k('s_cmp_eq_u32 s28, 3')
    k('s_cselect_b64 s[44:45], s[12:13], s[44:45]')
    k('s_mov_b64 exec, 15')
    k('global_load_dword v40, v6, s[44:45]')
    k('s_cbranch_scc1 A_w3')
    k(f's_mov_b32 exec_lo, {-1 if OPT["wt"] else 1}')
    k(f's_mov_b32 exec_hi, {0x7ff if OPT["wt"] else 0}')
    k('global_load_dword v41, v5, s[46:47]')
    k('s_mov_b64 exec, -1')
    k('s_waitcnt vmcnt(2)')
    k('s_branch A_go')
    k('A_w3:')
    if OPT['pages']:
        k('v_lshlrev_b32 v5, 20, v4')
        k('s_mov_b64 exec, 0xfff')
        k('global_load_dword v41, v5, s[26:27]')
        k('s_mov_b64 exec, 0xff')
        k('v_lshlrev_b32 v5, 7, v4')
        k('global_load_dword v42, v5, s[14:15]')
        k('global_load_dword v43, v5, s[16:17]')
    k('s_mov_b64 exec, -1')
    k(f's_waitcnt vmcnt({4 if OPT["pages"] else 1})')
    k('A_go:')
    st()
    k(f'buffer_store_dwordx4 v[8:11], v2, s[36:39], s3 offen {OPT["t_st"]}')
    k(f'buffer_store_dwordx4 v[12:15], v2, s[36:39], s3 offen offset:16 {OPT["t_st"]}')
    S, Q = 16, 24
    for e in range(8):
        k(f'v_dot2_f32_bf16 v{S + e}, v{8 + e}, s48, 0')
        k(f'v_dot2_f32_bf16 v{Q + e}, v{8 + e}, v{8 + e}, 0')
    for e in range(8):
        k(f'v_permlane32_swap_b32 v{S + e}, v{Q + e}')
    for e in range(8):
        k(f'v_add_f32 v{S + e}, v{S + e}, v{Q + e}')
    for e in range(4):
        k(f'v_permlane16_swap_b32 v{S + e}, v{S + 4 + e}')
    for e in range(4):
        k(f'v_add_f32 v{S + e}, v{S + e}, v{S + 4 + e}')
    for e in range(2):
        k(f'v_add_f32_dpp v{S + e}, v{S + e}, v{S + e} row_ror:8 row_mask:0xf bank_mask:0x3')
    for e in range(2):
        k(f'v_add_f32_dpp v{S + e}, v{S + 2 + e}, v{S + 2 + e} row_ror:8 row_mask:0xf bank_mask:0xc')
    k(f'v_add_f32_dpp v{S}, v{S}, v{S} row_half_mirror row_mask:0xf bank_mask:0x5')
    k(f'v_add_f32_dpp v{S}, v{S + 1}, v{S + 1} row_half_mirror row_mask:0xf bank_mask:0xa')
    k(f'v_add_f32_dpp v{S}, v{S}, v{S} quad_perm:[1,0,3,2] row_mask:0xf bank_mask:0xf')
    k(f'v_add_f32_dpp v{S}, v{S}, v{S} quad_perm:[2,3,0,1] row_mask:0xf bank_mask:0xf')
    k(f'ds_write_b32 v1, v{S}')
    k('s_cmp_ge_u32 s2, 4')
    k('s_cbranch_scc1 A_noclr')
    for i in range(4):
        k(f'v_mov_b32 v{32 + i}, 0')
    k('v_lshlrev_b32 v7, 4, v0')
    k('s_lshl_b32 s30, s2, 12')
    k(f's_add_u32 s30, s30, {WS_ST2}')
    k('buffer_store_dwordx4 v[32:35], v7, s[40:43], s30 offen')
    k('A_noclr:')
    st()
    k('s_waitcnt lgkmcnt(0)')
    k('s_barrier')
    st()
    if v1.DIAG:
        k('s_waitcnt vmcnt(2)')
        st()
    k('s_cmp_lg_u32 s28, 0')
    k('s_cbranch_scc1 A_end')
    k('ds_read2st64_b32 v[16:17], v1 offset0:0 offset1:1')
    k('ds_read2st64_b32 v[18:19], v1 offset0:2 offset1:3')
    k('v_bfe_u32 v5, v0, 4, 1')
    k('v_lshlrev_b32 v5, 5, v5')
    k('v_lshrrev_b32 v6, 5, v0')
    k('v_lshl_add_u32 v5, v6, 4, v5')
    k('v_and_b32 v6, 12, v0')
    k('v_add_u32 v5, v5, v6')
    k('s_lshl_b32 s30, s2, 6')
    k('v_cmp_gt_u32 vcc, 32, v0')
    k('s_waitcnt lgkmcnt(0)')
    k('v_add_f32 v16, v16, v17')
    k('v_add_f32 v18, v18, v19')
    k('v_add_f32 v16, v16, v18')
    k('v_mul_f32 v16, 0x3b000000, v16')
    k('v_mov_b32 v17, v16')
    k('v_permlane32_swap_b32 v16, v17')
    k('v_fma_f32 v17, -v16, v16, v17')
    k('v_max_f32 v17, 0, v17')
    bf16round(k, 17, 'v17')
    k('v_add_f32 v17, 0x3727c5ac, v17')
    bf16round(k, 17, 'v17')
    k('v_sqrt_f32 v17, v17')
    k('v_cvt_pk_bf16_f32 v16, -v16, v17')
    k('v_and_b32 v17, 0xffff0000, v16')
    k('v_lshlrev_b32 v16, 16, v16')
    k('v_rcp_f32 v17, v17')
    k('v_mul_f32 v16, v16, v17')
    k('v_cndmask_b32 v16, v16, v17, vcc')
    k('s_mov_b32 exec_lo, 0x11111111')
    k('s_mov_b32 exec_hi, 0x11111111')
    k('buffer_store_dword v16, v5, s[40:43], s30 offen')
    k('A_end:')
    st.finish()
    if OPT['late']:
        k('s_cmp_eq_u32 s28, 3')
        k('s_cbranch_scc1 A_exit')
        k('s_mov_b32 exec_lo, -1')
        k('s_mov_b32 exec_hi, 0x7ff')
        k('v_lshlrev_b32 v5, 7, v4')
        k('v_add_u32 v5, s31, v5')
        k('global_load_dword v41, v5, s[46:47]')
    k('A_exit:')
    k('s_endpgm')
    return fin('prep_kernel', k, 48, 56)


TA, TF = 0, 50688
KC = TF + 16896 + 16
KC_CH = 1568
KE = KC - 16 + 2 * KC_CH
UB = KE + 2 * 8320
B_LDS = UB + 2 * 4608
RED, ZB, CS = 0, 16384, 32768


def kern_b():
    k = Asm()
    k('s_cmp_ge_u32 s2, 256')
    k('s_cbranch_scc1 B_exit')
    st = Stamps(k, 1)
    k(f's_load_dwordx8 s[4:11], s[0:1], {A_LAR}')
    k(f's_load_dwordx4 s[12:15], s[0:1], {A_LDT}')
    k(f's_load_dwordx2 s[18:19], s[0:1], {D_WS}')
    k(f's_load_dwordx4 s[24:27], s[0:1], {W_G}')
    k('s_and_b32 s3, s2, 7')
    k('s_lshl_b32 s3, s3, 5')
    k('s_lshr_b32 s20, s2, 3')
    k('s_add_u32 s3, s3, s20')
    k('s_lshl_b32 s20, s3, 2')
    k('s_lshl_b32 s21, s3, 9')
    k('s_lshl_b32 s28, s3, 5')
    k('v_and_b32 v33, 255, v0')
    k('v_lshl_add_u32 v1, v33, 1, s21')
    k('v_lshrrev_b32 v2, 1, v0')
    k('v_lshlrev_b32 v2, 13, v2')
    k('v_and_b32 v3, 1, v0')
    k('v_lshl_add_u32 v2, v3, 4, v2')
    k('v_lshlrev_b32 v3, 5, v0')
    k('v_lshrrev_b32 v34, 6, v0')
    k('v_readfirstlane_b32 s60, v34')
    k('s_waitcnt lgkmcnt(0)')
    for i in range(4):
        k(f'global_load_ushort v{4 + i}, v1, s[{4 + 2 * i}:{5 + 2 * i}]')
    k('s_load_dword s22, s[12:13], s20')
    k('s_load_dword s23, s[14:15], s20')
    srd(k, 40, 18, 0x200000, WS_T)
    srd(k, 44, 18, 0x10000)
    k('buffer_load_dwordx4 v[8:11], v2, s[40:43], s28 offen')
    k('buffer_load_dwordx4 v[12:15], v3, s[44:47], 0 offen')
    k('buffer_load_dwordx4 v[16:19], v3, s[44:47], 0 offen offset:16')
    srd(k, 48, 18, 0x200000, WS_HT)
    st()
    k('s_lshr_b32 s59, s60, 2')
    k('s_bfe_u32 s61, s60, 0x10001')
    k('s_and_b32 s62, s60, 1')
    k('v_lshlrev_b32 v34, 3, v33')
    k('v_sub_u32 v34, 2047, v34')
    k('v_cvt_f32_u32 v35, v34')
    k(f's_mul_i32 s63, s59, {KC_CH}')
    k('v_mov_b32 v36, s63')
    k('s_add_u32 s63, s63, 0x8500')
    k('v_lshl_add_u32 v34, v34, 1, s63')
    k('v_cmp_lt_u32 vcc, 231, v33')
    for e in range(0, 9, 2):
        k(f'v_subrev_f32 v37, {f32(e)}, v35')
        k(f'v_subrev_f32 v38, {f32(e + 1)}, v35')
        k('v_cvt_pk_bf16_f32 v37, v37, v38')
        for h in range(2):
            if e + h < 9:
                k(f'v_mad_u32_u16 v{24 + e + h}, v37, 2, v36 op_sel:[{h},0,0,0]')
                k(f'v_subrev_u32 v38, {2 * (e + h)}, v34')
                k(f'v_cndmask_b32 v{24 + e + h}, v{24 + e + h}, v38, vcc')
    k('v_mov_b32 v34, 0')
    k('v_lshlrev_b32 v35, 2, v33')
    k('s_mul_i32 s63, s59, 4608')
    k(f's_add_u32 s63, s63, {UB}')
    k('v_add_u32 v36, s63, v35')
    k('v_cmp_gt_u32 vcc, 120, v33')
    k('s_and_saveexec_b64 s[54:55], vcc')
    k('ds_write_b32 v36, v34')
    k('s_mov_b64 exec, s[54:55]')
    k('s_mul_i32 s63, s59, 8320')
    k(f's_add_u32 s63, s63, {KE + 4096}')
    k('v_add_u32 v36, s63, v35')
    k(f's_mul_i32 s63, s59, {KC_CH}')
    k(f's_add_u32 s63, s63, {KC - 4}')
    k('v_mov_b32 v37, s63')
    k('v_cmp_gt_u32 vcc, 16, v33')
    k('s_and_saveexec_b64 s[54:55], vcc')
    k('ds_write_b32 v36, v34')
    k('ds_write_b32 v36, v34 offset:4160')
    k('ds_write_b32 v37, v34')
    k('s_mov_b64 exec, s[54:55]')
    k(f's_mul_i32 s63, s61, {48 * 528}')
    k('s_lshl_b32 s64, s62, 8')
    k('s_add_u32 s52, s63, s64')
    k(f's_mul_i32 s63, s61, {16 * 528}')
    k('s_add_u32 s53, s63, s64')
    k('s_waitcnt lgkmcnt(0)')
    k('s_lshl_b32 s63, s61, 4')
    k('s_lshr_b32 s63, s22, s63')
    k('s_lshl_b32 s63, s63, 16')
    k(f'v_mov_b32 v44, {hex(LOG2E)}')
    k('v_mul_f32 v44, s63, v44')
    k('v_exp_f32 v44, v44')
    bf16round(k, 44, 'v44')
    k(f'v_mul_f32 v45, {hex(INV2PI)}, v44')
    st()
    k('s_waitcnt vmcnt(3)')
    st()
    k('v_lshlrev_b32 v4, 16, v4')
    k('v_lshlrev_b32 v5, 16, v5')
    k(f'v_mul_f32 v4, {hex(LOG2E)}, v4')
    k('v_exp_f32 v4, v4')
    k('v_mul_f32 v5, v5, v45')
    bf16round(k, 4, 'v4')
    k('v_mul_f32 v4, v4, v44')
    k(f'v_mul_f32 v4, {hex(LOG2E | 0x80000000)}, v4')

    def direct(lst):
        for i, (d, p, conj) in enumerate(lst):
            k(f'v_mul_f32 v{88 + 2 * i}, {f32(p)}, v4')
            k(f'v_mul_f32 v{89 + 2 * i}, {f32(p)}, v5')
        for i, (d, p, conj) in enumerate(lst):
            k(f'v_fract_f32 v{89 + 2 * i}, v{89 + 2 * i}')
            k(f'v_exp_f32 v{88 + 2 * i}, v{88 + 2 * i}')
        for i, (d, p, conj) in enumerate(lst):
            k(f'v_cos_f32 v{d}, v{89 + 2 * i}')
            k(f'v_sin_f32 v{d + 1}, v{89 + 2 * i}')
        for i, (d, p, conj) in enumerate(lst):
            neg = ' neg_hi:[1,0]' if conj else ''
            k(f'v_pk_mul_f32 {v(d, 2)}, {v(d, 2)}, {v(88 + 2 * i, 2)} op_sel_hi:[1,0]{neg}')

    pk = [84, 85, 86, 87]
    cnt = [0]

    def put(off, src):
        r = pk[cnt[0] % 4]
        cnt[0] += 1
        k(f'v_cvt_pk_bf16_f32 v{r}, v{src}, v{src + 1}')
        k(f'ds_write_addtid_b32 v{r} offset:{off}')

    F, W8, W128, T0, T1 = 46, 50, 52, 54, 56
    E, Q, P = 64, 80, 82
    k('s_mov_b32 m0, s52')
    k('s_cmp_eq_u32 s59, 1')
    k('s_cbranch_scc1 B_r1')
    direct([(E + 2, 1.0, 0), (W128, 128.0, 0)])
    k('v_mov_b32 v84, 0x3f80')
    k('ds_write_addtid_b32 v84')
    cnt[0] = 1
    put(528, E + 2)
    put(8 * 528, W128)
    cmul(k, P, W128, E + 2, T1)
    put(9 * 528, P)
    for r in range(2, 8):
        cmul(k, E + 2 * r, E + 2 * (r - 1), E + 2, T0)
        put(r * 528, E + 2 * r)
        cmul(k, P, W128, E + 2 * r, T1)
        put((8 + r) * 528, P)
    for i in range(2, 8):
        o = 1 if i < 4 else 2
        row0 = 8 * o + ((8 * i) >> o)
        cmul(k, Q, Q if i > 2 else W128, W128, T0)
        put(row0 * 528, Q)
        for idx, r in enumerate(range(0, 8, 1 << o)):
            if r:
                cmul(k, P, Q, E + 2 * r, T1)
                put((row0 + idx) * 528, P)
    k('s_branch B_tab')
    k('B_r1:')
    direct([(W8, 8.0, 1), (W128, 128.0, 0), (Q, 1024.0, 0)])
    k('v_add_f32 v44, v44, v44')
    k('v_lshlrev_b32 v6, 16, v6')
    k('v_lshlrev_b32 v7, 16, v7')
    k(f'v_pk_mul_f32 {v(F, 2)}, v[6:7], v[44:45] op_sel_hi:[1,0] neg_hi:[1,0]')
    put(32 * 528, Q)
    for i in range(9, 17):
        cmul(k, Q, Q, W128, T0)
        put((24 + i) * 528, Q)
    k('s_mov_b32 m0, s53')
    put(TF, F)
    for j in range(1, 16):
        cmul(k, F, F, W8, T1)
        put(TF + j * 528, F)
    k('B_tab:')
    st()
    k('v_and_b32 v4, 15, v0')
    k('v_bfe_u32 v5, v0, 4, 2')
    k('v_and_b32 v6, 1, v5')
    k('v_lshrrev_b32 v7, 1, v5')
    k('v_lshlrev_b32 v20, 8, v6')
    k('v_lshl_add_u32 v20, v7, 7, v20')
    k('v_mul_u32_u24 v21, 528, v4')
    k('v_add_u32 v20, v20, v21')
    k('s_lshr_b32 s57, s60, 1')
    k(f's_mul_i32 s63, s62, {16 * 528}')
    k(f's_add_u32 s63, s63, {TF}')
    k(f's_mul_i32 s64, s62, {48 * 528}')
    k(f's_mul_i32 s58, s57, {16 * 528}')
    k('s_add_u32 s64, s64, s58')
    k('s_cmp_eq_u32 s57, 2')
    k('s_cselect_b32 s58, s63, s64')
    k('s_cselect_b32 s63, s64, s63')
    k('v_add_u32 v21, s63, v20')
    k('v_add_u32 v20, s58, v20')
    k('v_lshlrev_b32 v22, 7, v7')
    k('v_lshl_add_u32 v22, v6, 2, v22')
    k('v_lshl_add_u32 v22, v4, 3, v22')
    k('v_mov_b32 v23, 2')
    k('s_cmp_eq_u32 s57, 0')
    k('s_cbranch_scc1 B_ka')
    k('v_lshlrev_b32 v22, 4, v4')
    k('v_lshl_add_u32 v22, v5, 2, v22')
    k('v_add_u32 v22, 512, v22')
    k('s_cmp_eq_u32 s57, 2')
    k('s_cbranch_scc1 B_ka')
    k('v_sub_u32 v22, 2, v7')
    k('v_lshlrev_b32 v22, v22, v4')
    k('v_lshl_add_u32 v22, v5, 6, v22')
    k('v_add_u32 v22, 256, v22')
    k('v_mad_u32_u24 v23, v7, 30, 2')
    k('B_ka:')
    k('v_add_u32 v23, v22, v23')
    k(f's_mul_i32 s63, s62, {KC_CH}')
    k(f's_add_u32 s63, s63, {KC}')
    k('v_lshl_add_u32 v22, v22, 1, s63')
    k('v_lshl_add_u32 v23, v23, 1, s63')
    k('s_waitcnt lgkmcnt(0)')
    k('s_barrier')
    st()
    FA, EB, AC = 44, 76, 36
    k('s_cmp_ge_u32 s60, 6')
    k('s_cbranch_scc1 B_nokc')
    for s_ in range(8):
        k(f'ds_read_b128 {v(FA + 4 * s_, 4)}, v20 offset:{16 * s_}')
        k(f'ds_read_b128 {v(EB + 4 * s_, 4)}, v21 offset:{16 * s_}')
        if s_ >= 3:
            q = s_ - 3
            k('s_waitcnt lgkmcnt(6)')
            k(f'v_mfma_f32_16x16x32_bf16 {v(AC, 4)}, {v(FA + 4 * q, 4)}, {v(EB + 4 * q, 4)}, {"0" if q == 0 else v(AC, 4)}')
    for q in range(5, 8):
        k(f's_waitcnt lgkmcnt({2 * (7 - q)})')
        k(f'v_mfma_f32_16x16x32_bf16 {v(AC, 4)}, {v(FA + 4 * q, 4)}, {v(EB + 4 * q, 4)}, {v(AC, 4)}')
    k('B_nokc:')
    Z0, Z1, U = 196, 200, 44
    k('s_waitcnt vmcnt(0)')
    for e in range(4):
        k(f'v_lshlrev_b32 v{Z0 + e}, 16, v{8 + e}')
        k(f'v_and_b32 v{Z1 + e}, 0xffff0000, v{8 + e}')
    k('s_lshl_b32 s56, s23, 16')
    k('s_and_b32 s58, s23, 0xffff0000')
    k('v_lshlrev_b32 v52, 3, v0')
    k(f'v_add_u32 v52, {UB + 480}, v52')
    for ch, Z in ((0, Z0), (1, Z1)):
        for e in (0, 2):
            k(f'v_pk_fma_f32 {v(U + e, 2)}, {v(Z + e, 2)}, {v(12 + e, 2)}, {v(16 + e, 2)}')
        for e in (0, 2):
            k(f'v_cvt_pk_bf16_f32 v{48 + 2 * ch + e // 2}, v{U + e}, v{U + e + 1}')
            k(f'v_pk_fma_f32 {v(Z + e, 2)}, {v(U + e, 2)}, s[{56 + 2 * ch}:{57 + 2 * ch}], {v(Z + e, 2)} op_sel_hi:[1,0,1]')
        k(f'ds_write_b64 v52, {v(48 + 2 * ch, 2)} offset:{4608 * ch}')
    k('s_cmp_ge_u32 s60, 6')
    k('s_cbranch_scc1 B_nokw')
    k(f'v_cvt_pk_bf16_f32 v40, v{AC}, v{AC + 1}')
    k(f'v_cvt_pk_bf16_f32 v41, v{AC + 2}, v{AC + 3}')
    k('ds_write_b32 v22, v40')
    k('ds_write_b32 v23, v41')
    k('B_nokw:')
    k('s_mul_i32 s63, s59, 8320')
    k(f's_add_u32 s63, s63, {KE}')
    k('v_lshl_add_u32 v11, v33, 4, s63')
    k('v_lshlrev_b32 v204, 4, v0')
    k('s_waitcnt lgkmcnt(0)')
    k('s_barrier')
    st()
    G, O = 44, 56
    for e in range(9):
        k(f'ds_read_u16 v{G + e}, v{24 + e} offset:{KC - 0x8500}')
    k('v_sub_u32 v12, 1807, v4')
    k('v_lshrrev_b32 v12, 1, v12')
    k('v_lshl_add_u32 v12, v5, 2, v12')
    k('v_lshlrev_b32 v12, 2, v12')
    k('v_and_b32 v13, 1, v4')
    k('v_xor_b32 v13, 1, v13')
    k('v_mul_u32_u24 v13, 4160, v13')
    k('s_mul_i32 s63, s61, 8320')
    k('s_lshl_b32 s64, s62, 8')
    k('s_add_u32 s63, s63, s64')
    k(f's_add_u32 s63, s63, {KE - 512}')
    k('v_add3_u32 v12, v12, v13, s63')
    for q in range(1, 4):
        k(f'v_subrev_u32 v{12 + q}, {1024 * q}, v12')
    k('v_lshlrev_b32 v16, 5, v4')
    k('v_lshl_add_u32 v16, v5, 4, v16')
    k('s_mul_i32 s63, s61, 4608')
    k('s_add_u32 s63, s63, s64')
    k(f's_add_u32 s63, s63, {UB}')
    k('v_add_u32 v16, s63, v16')
    k('s_waitcnt lgkmcnt(0)')
    for q in range(4):
        k(f'v_lshl_or_b32 v{O + q}, v{G + 2 * q + 1}, 16, v{G + 2 * q}')
    k(f'ds_write_b128 v11, {v(O, 4)}')
    for q in range(4):
        k(f'v_lshl_or_b32 v{O + 4 + q}, v{G + 2 * q + 2}, 16, v{G + 2 * q + 1}')
    k(f'ds_write_b128 v11, {v(O + 4, 4)} offset:4160')
    k('s_waitcnt lgkmcnt(0)')
    k('s_barrier')
    st()
    zw = [f'ds_write_b128 v204, {v(Z0, 4)} offset:{ZB}', f'ds_write_b128 v204, {v(Z1, 4)} offset:{ZB + 8192}']
    k('s_cmp_ge_u32 s60, 4')
    k('s_cbranch_scc1 B_help')
    ACC = 36
    AF = [68, 132]
    BF = [100, 164]

    def reads(c):
        out = []
        b = c & 1
        for d in range(8):
            off = (128 if d % 2 == 0 else 0) + 16 * c
            r = AF[b] + 4 * d
            out.append(f'ds_read2_b32 {v(r, 2)}, v{12 + d // 2} offset0:{off} offset1:{off + 1}')
            out.append(f'ds_read2_b32 {v(r + 2, 2)}, v{12 + d // 2} offset0:{off + 2} offset1:{off + 3}')
            r = BF[b] + 4 * d
            out.append(f'ds_read_b128 {v(r, 4)}, v16 offset:{512 * d + 64 * c}')
        return out

    started = set()

    def mf(c, d, s_):
        t = d + s_
        b = c & 1
        acc = v(ACC + 4 * t, 4)
        src = acc if t in started else '0'
        started.add(t)
        return f'v_mfma_f32_16x16x32_bf16 {acc}, {v(AF[b] + 4 * d, 4)}, {v(BF[b] + 4 * s_, 4)}, {src}'

    r0 = reads(0)
    order = [[(d, s_) for d in range(lv + 1) for s_ in range(lv + 1) if max(d, s_) == lv and d + s_ < 8] for lv in range(8)]
    for x in r0[:12]:
        k(x)
    pend = r0[12:] + reads(1)
    issued = 12
    for lv in range(8):
        needn = 3 * (lv + 1)
        k(f's_waitcnt lgkmcnt({min(issued - needn, 15)})')
        for i, (d, s_) in enumerate(order[lv]):
            k(mf(0, d, s_))
            if pend and issued - needn < 14:
                k(pend.pop(0))
                issued += 1
    for x in pend:
        k(x)
    tail = ['v_and_b32 v18, 63, v0', 'v_lshlrev_b32 v18, 4, v18', 's_lshl_b32 s63, s60, 12', 'v_add_u32 v19, s63, v18',
            'v_xor_b32 v18, 4096, v19',
            'v_lshlrev_b32 v17, 6, v4', 'v_lshl_add_u32 v17, v5, 4, v17', 'v_add_u32 v17, s63, v17',
            'v_lshrrev_b32 v6, 1, v4', 'v_lshlrev_b32 v6, 15, v6', 'v_and_b32 v7, 1, v4', 'v_lshl_add_u32 v6, v7, 5, v6',
            'v_lshl_add_u32 v6, v5, 3, v6', 's_lshl_b32 s63, s3, 7', 's_lshl_b32 s64, s61, 6', 's_add_u32 s63, s63, s64',
            's_lshl_b32 s64, s62, 20', 's_add_u32 s63, s63, s64']
    for c in range(1, 4):
        k('s_waitcnt lgkmcnt(0)')
        pend = reads(c + 1) if c < 3 else zw + tail
        pairs = [p for lv in range(8) for p in order[lv]]
        for (d, s_) in pairs:
            k(mf(c, d, s_))
            if pend:
                k(pend.pop(0))
    st()
    k('s_cmp_eq_u32 s62, 1')
    k('s_cbranch_scc1 B_x1')
    for t in range(4):
        k(f'ds_write_b128 v19, {v(ACC + 16 + 4 * t, 4)} offset:{RED + 1024 * t}')
    k('s_branch B_x2')
    k('B_x1:')
    for t in range(4):
        k(f'ds_write_b128 v19, {v(ACC + 4 * t, 4)} offset:{RED + 1024 * t}')
    for i in range(0, 16, 2):
        k(f'v_mov_b64 {v(ACC + i, 2)}, {v(ACC + 16 + i, 2)}')
    k('B_x2:')
    k('s_waitcnt lgkmcnt(0)')
    k('s_barrier')
    for t in range(4):
        k(f'ds_read_b128 {v(68 + 8 * t, 4)}, v18 offset:{RED + 1024 * t}')
        k(f'ds_read_b128 {v(72 + 8 * t, 4)}, v17 offset:{ZB + 1024 * t}')
    st()
    for t in range(4):
        k(f's_waitcnt lgkmcnt({6 - 2 * t})')
        for i in (0, 2):
            k(f'v_pk_add_f32 {v(ACC + 4 * t + i, 2)}, {v(ACC + 4 * t + i, 2)}, {v(68 + 8 * t + i, 2)}')
        for i in (0, 2):
            k(f'v_pk_add_f32 {v(ACC + 4 * t + i, 2)}, {v(ACC + 4 * t + i, 2)}, {v(72 + 8 * t + i, 2)}')
        k(f'v_cvt_pk_bf16_f32 v{100 + 2 * t}, v{ACC + 4 * t}, v{ACC + 4 * t + 1}')
        k(f'v_cvt_pk_bf16_f32 v{101 + 2 * t}, v{ACC + 4 * t + 2}, v{ACC + 4 * t + 3}')
        k(f'buffer_store_dwordx2 {v(100 + 2 * t, 2)}, v6, s[48:51], s63 offen {OPT["h_st"]}')
        if t < 3:
            k(f's_add_u32 s63, s63, {8 * 32768}')
    k('s_branch B_end')
    k('B_help:')
    for x in zw:
        k(x)
    k('s_cmp_ge_u32 s2, 86')
    k('s_cselect_b32 s36, s26, s24')
    k('s_cselect_b32 s37, s27, s25')
    k('s_cselect_b32 s29, 86, 0')
    k('s_cselect_b32 s30, 64, 0')
    k(f's_mov_b32 s38, {512 * 2752}')
    k('s_mov_b32 s39, 0x20000')
    k('s_sub_u32 s29, s2, s29')
    k('v_lshrrev_b32 v40, 1, v33')
    k('v_mul_u32_u24 v40, 2752, v40')
    k('v_and_b32 v41, 1, v0')
    k('v_lshl_add_u32 v40, v41, 4, v40')
    k('s_lshl_b32 s31, s29, 5')
    k('s_cmp_ge_u32 s2, 172')
    k('s_cselect_b32 s31, 0x7fff0000, s31')
    for i in range(4):
        k(f'buffer_load_dwordx4 {v(44 + 4 * i, 4)}, v40, s[36:39], s31 offen')
        if i < 3:
            k(f's_add_u32 s31, s31, {128 * 2752}')
    npre = OPT['npre']
    k('s_cmp_eq_u32 s62, 1')
    k('s_cselect_b32 s32, s26, s24')
    k('s_cselect_b32 s33, s27, s25')
    k(f's_mov_b32 s34, {512 * 2752}')
    k('s_mov_b32 s35, 0x20000')
    k('v_and_b32 v42, 63, v0')
    k('v_lshlrev_b32 v42, 7, v42')
    k('s_lshr_b32 s63, s2, 3')
    k('s_lshl_b32 s63, s63, 13')
    k('s_lshl_b32 s64, s61, 18')
    k('s_add_u32 s63, s63, s64')
    for j in range(npre // 2):
        k(f'buffer_load_dword v{62 + j}, v42, s[32:35], s63 offen')
        k(f's_add_u32 s63, s63, {1 << 19}')
    k(f's_waitcnt vmcnt({npre // 2})')
    for i in range(4):
        for j in range(4):
            src = 44 + 4 * i + j
            if i == 0:
                k(f'v_lshlrev_b32 v{12 + 2 * j}, 16, v{src}')
                k(f'v_and_b32 v{13 + 2 * j}, 0xffff0000, v{src}')
            else:
                k(f'v_lshlrev_b32 v20, 16, v{src}')
                k(f'v_and_b32 v21, 0xffff0000, v{src}')
                k(f'v_add_f32 v{12 + 2 * j}, v{12 + 2 * j}, v20')
                k(f'v_add_f32 v{13 + 2 * j}, v{13 + 2 * j}, v21')
    allreduce(k, list(range(12, 20)), 20, first=1)
    k('v_and_b32 v3, 192, v0')
    k('v_lshl_add_u32 v3, v41, 5, v3')
    k('s_mov_b64 exec, 3')
    k(f'ds_write_b128 v3, v[12:15] offset:{CS}')
    k(f'ds_write_b128 v3, v[16:19] offset:{CS + 16}')
    k('s_mov_b64 exec, -1')
    k(f'v_lshl_add_u32 v3, v4, 2, 0')
    k(f'v_add_u32 v3, {CS}, v3')
    k('v_lshrrev_b32 v5, 2, v4')
    k('v_lshlrev_b32 v6, 1, v5')
    k('v_lshrrev_b32 v5, 1, v5')
    k('v_or_b32 v5, v5, v6')
    k('v_and_b32 v5, 3, v5')
    k('v_and_b32 v6, 3, v4')
    k('v_lshl_add_u32 v5, v5, 2, v6')
    k('v_lshlrev_b32 v5, 2, v5')
    k('s_lshl_b32 s31, s29, 7')
    k('s_add_u32 s31, s31, s30')
    k(f's_add_u32 s31, s31, {WS_SFR}')
    if v1.DIAG:
        k(f's_memtime s[{v1.SB + 2 * (st.n - 2)}:{v1.SB + 2 * (st.n - 2) + 1}]')
    k('s_waitcnt lgkmcnt(0)')
    k('s_barrier')
    if v1.DIAG:
        k(f's_memtime s[{v1.SB + 2 * (st.n - 1)}:{v1.SB + 2 * (st.n - 1) + 1}]')
    k('s_cmp_lg_u32 s60, 4')
    k('s_cbranch_scc1 B_end')
    k('s_cmp_ge_u32 s2, 172')
    k('s_cbranch_scc1 B_end')
    k('ds_read2_b32 v[12:13], v3 offset0:0 offset1:16')
    k('ds_read2_b32 v[14:15], v3 offset0:32 offset1:48')
    k('s_waitcnt lgkmcnt(0)')
    k('v_add_f32 v12, v12, v13')
    k('v_add_f32 v14, v14, v15')
    k('v_add_f32 v12, v12, v14')
    bf16round(k, 13, 'v12')
    k('v_sub_f32 v14, v12, v13')
    k('v_cvt_pk_bf16_f32 v12, v13, v14')
    k('s_mov_b64 exec, 0xffff')
    k('buffer_store_dword v12, v5, s[44:47], s31 offen')
    k('B_end:')
    st.finish()
    k('B_exit:')
    k('s_endpgm')
    return fin('conv_kernel', k, 208, 72)


def main(path, ffn):
    launch = (f'; @launch kernel=prep_kernel grid=(256,1,1) block=(256,1,1) lds=1024\n'
              f'; @launch kernel=conv_kernel grid=(256,1,1) block=(512,1,1) lds={B_LDS}\n')
    l2, t2 = ffn()
    txt = HEADER + launch + l2 + '.amdgcn_target "amdgcn-amd-amdhsa--gfx950"\n' + kern_a() + kern_b() + t2 + '.text\ncode_end:\n'
    open(path, 'w').write(txt)


def old_ffn():
    return (f'; @launch kernel=gemm1_kernel grid=(240,1,1) block=(256,1,1) lds={v1.C_LDS}\n'
            f'; @launch kernel=gemm2_kernel grid=(256,1,1) block=(256,1,1) lds={v1.D_LDS}\n'), v1.kern_c() + v1.kern_d()


if __name__ == '__main__':
    if '--diag' in sys.argv:
        v1.DIAG = True
        sys.argv.remove('--diag')
    main(sys.argv[1], old_ffn)
```

```python
import v1, v2
from v2 import *

RG = 40960
GOFF, UOFF = 16384, 28672
F_LDS = 4 * RG
REGION_OF = [3, 2, 0, 1]
SPIN = 0x100000


class VM:
    def __init__(self, k):
        self.k, self.seq = k, []

    def add(self, tag, n=1):
        self.seq += [tag] * n

    def wait(self, tag):
        last = max(i for i, x in enumerate(self.seq) if x == tag)
        n = len(self.seq) - 1 - last
        assert n < 64
        self.k(f's_waitcnt vmcnt({n})')


def kern_f():
    k = Asm()
    k('s_cmp_ge_u32 s2, 256')
    k('s_cbranch_scc1 F_exit')
    st = Stamps(k, 2)
    k(f's_load_dwordx8 s[4:11], s[0:1], {W_G}')
    k(f's_load_dwordx4 s[12:15], s[0:1], {D_DBG}')
    k('s_and_b32 s3, s2, 7')
    k('s_lshr_b32 s16, s2, 3')
    k('s_lshl_b32 s3, s3, 1')
    k('s_and_b32 s17, s16, 1')
    k('s_add_u32 s3, s3, s17')
    k('s_lshr_b32 s16, s16, 1')
    k('v_lshrrev_b32 v1, 6, v0')
    k('v_readfirstlane_b32 s17, v1')
    k('v_and_b32 v1, 63, v0')
    k('v_lshlrev_b32 v2, 4, v1')
    k('s_cmp_ge_u32 s17, 4')
    k('s_cbranch_scc1 F_comp')
    n0 = st.n
    loader(k, st)
    nl = min(st.n, 12)
    st.k = k
    k('F_comp:')
    st.n = n0
    compute(k, st)
    st.n = max(st.n, nl)
    k('F_end:')
    st.finish()
    k('F_exit:')
    k('s_endpgm')
    return fin('ffn_kernel', k, 256, 72)


def loader(k, st):
    k('s_and_b32 s18, s17, 1')
    k('s_lshr_b32 s19, s17, 1')
    k('s_lshl_b32 s20, s18, 1')
    for j in range(3):
        k(f'v_add_u32 v6, {64 * j}, v1')
        k('v_mul_u32_u24 v7, 5462, v6')
        k('v_lshrrev_b32 v7, 16, v7')
        k('v_mul_u32_u24 v8, 12, v7')
        k('v_sub_u32 v8, v6, v8')
        k('v_xor_b32 v8, s20, v8')
        k('v_mul_u32_u24 v7, 2752, v7')
        k('v_lshl_add_u32 v7, v8, 4, v7')
        k(f'v_subrev_u32 v{3 + j}, {1024 * j}, v7')
    k('s_lshl_b32 s44, s3, 2')
    k('s_add_u32 s44, s44, s17')
    k('s_lshl_b32 s44, s44, 15')
    k(f's_mul_i32 s45, s19, {16 * 2752}')
    k('s_mul_i32 s46, s16, 192')
    k('s_add_u32 s45, s45, s46')
    k('s_lshl_b32 s46, s17, 12')
    k('s_mul_i32 s47, s18, 12288')
    k('s_mul_i32 s48, s19, 3072')
    k('s_add_u32 s47, s47, s48')
    k(f's_add_u32 s47, s47, {GOFF}')
    k('s_waitcnt lgkmcnt(0)')
    srd(k, 20, 14, 0x200000, WS_HT)
    k('s_cmp_eq_u32 s18, 1')
    k('s_cselect_b32 s24, s6, s4')
    k('s_cselect_b32 s25, s7, s5')
    k(f's_mov_b32 s26, {512 * 2752}')
    k('s_mov_b32 s27, 0x20000')
    vm = VM(k)

    def half(hc):
        c, hf = hc >> 1, hc & 1
        stg = (c % 3) * RG
        k(f's_add_u32 m0, s46, {stg}')
        for j in range(2):
            k(f'buffer_load_dwordx4 v2, s[20:23], s44 offen offset:{2048 * hf + 1024 * j} lds')
        k(f's_add_u32 m0, s47, {stg + 6144 * hf}')
        for j in range(3):
            k(f'buffer_load_dwordx4 v{3 + j}, s[24:27], s45 offen offset:{1024 * j} lds')
        k(f's_add_u32 s45, s45, {32 * 2752}')
        if hf:
            k('s_add_u32 s44, s44, 4096')
        vm.add(('h', hc), 5)

    def setup2():
        srd(k, 28, 8, 1376 * 1024)
        srd(k, 32, 10, 2048 * 1024)
        srd(k, 36, 14, H_BYTES, WS_H)
        srd(k, 40, 14, 0x10000)
        k('s_lshr_b32 s49, s16, 1')
        if OPT.get('dtx'):
            k(f's_xor_b32 s49, s49, {OPT["dtx"]}')
        k('s_and_b32 s50, s16, 1')
        k('s_lshl_b32 s51, s3, 1')
        k('s_add_u32 s51, s51, s50')
        k('s_lshl_b32 s52, s51, 1')
        k('s_add_u32 s52, s52, s18')
        k(f's_mul_i32 s53, s19, {43 * 16384}')
        k('s_lshl_b32 s54, s49, 7')
        k('s_add_u32 s53, s53, s54')
        k('s_lshl_b32 s54, s18, 14')
        k('s_add_u32 s54, s54, s53')
        k('s_lshl_b32 s55, s17, 11')
        k('s_lshl_b32 s56, s52, 15')
        k('s_lshl_b32 s57, s49, 12')
        k('s_add_u32 s56, s56, s57')
        k('s_lshl_b32 s57, s19, 11')
        k('s_add_u32 s56, s56, s57')
        k('s_mul_i32 s57, s52, 86')
        k('s_mul_i32 s58, s19, 43')
        k('s_add_u32 s57, s57, s58')
        k('s_lshl_b32 s57, s57, 10')
        k('s_lshl_b32 s58, s52, 15')
        k('s_lshl_b32 s59, s49, 7')
        k('s_add_u32 s58, s58, s59')
        k('s_lshl_b32 s59, s19, 6')
        k('s_add_u32 s58, s58, s59')
        k('s_lshl_b32 s59, s51, 7')
        k('s_mul_i32 s60, s19, 56')
        k('s_add_u32 s59, s59, s60')
        k(f's_add_u32 s59, s59, {WS_FLG}')
        k('v_lshrrev_b32 v6, 3, v1')
        k('v_and_b32 v7, 7, v1')
        k('v_bfe_u32 v8, v1, 4, 1')
        k('v_lshlrev_b32 v9, 2, v8')
        k('v_xor_b32 v7, v7, v9')
        k('v_lshlrev_b32 v6, 10, v6')
        k('v_lshl_add_u32 v6, v7, 4, v6')
        k(f'v_add_u32 v7, {8192 - 1024}, v6')
        k('v_lshrrev_b32 v12, 5, v1')
        k('v_bfe_u32 v13, v1, 2, 2')
        k('v_lshl_add_u32 v9, v12, 3, v13')
        k('v_lshlrev_b32 v10, 7, v9')
        k('v_lshrrev_b32 v9, 1, v13')
        k('v_xor_b32 v9, s19, v9')
        k('v_lshl_add_u32 v10, v9, 6, v10')
        k('v_and_b32 v9, 1, v1')
        k('v_bfe_u32 v11, v1, 1, 1')
        k('v_lshl_add_u32 v11, v8, 1, v11')
        k('v_lshl_add_u32 v9, v9, 2, v11')
        k('v_lshl_add_u32 v10, v9, 3, v10')
        k(f's_add_u32 s60, s55, {3 * RG}')
        k('v_add_u32 v14, s60, v10')
        k('v_xor_b32 v15, 64, v14')
        k('s_lshl_b32 s61, s19, 12')
        k(f's_add_u32 s61, s61, {3 * RG}')
        k('v_add_u32 v10, s61, v10')
        k('v_xor_b32 v11, 64, v10')
        k('v_lshl_add_u32 v9, v12, 4, v13')
        k('v_lshlrev_b32 v9, 6, v9')
        k('v_lshl_add_u32 v9, v8, 5, v9')
        k('v_and_b32 v13, 3, v1')
        k('v_lshl_add_u32 v9, v13, 3, v9')
        k('v_add_u32 v9, s60, v9')
        k('v_and_b32 v13, 31, v1')
        k('v_lshlrev_b32 v13, 10, v13')
        k('v_lshl_add_u32 v12, v12, 5, v13')
        k('v_lshlrev_b32 v13, 2, v1')

    def wd(tag, slot_off, src, step):
        k(f's_add_u32 m0, s55, {slot_off}')
        k(f's_add_u32 s62, s{src}, {step * 16384}')
        k('buffer_load_dwordx4 v6, s[28:31], s62 offen lds')
        k('buffer_load_dwordx4 v7, s[28:31], s62 offen offset:1024 lds')
        vm.add(tag, 2)

    def pre(i):
        wd(('p', i), 3 * RG + 8192 * i, 53, i)

    def res():
        k(f's_add_u32 m0, s55, {3 * RG + 8192 * 3}')
        k('buffer_load_dwordx4 v2, s[20:23], s56 offen lds')
        k('buffer_load_dwordx4 v2, s[20:23], s56 offen offset:1024 lds')
        vm.add(('p', 3), 2)

    def grp(m):
        wd(('g', m), REGION_OF[m // 5] * RG + 8192 * (m % 5), 54, 3 + 2 * m)

    PRE, RES, AF, ACC, HB = 16, 40, [48, 56], 64, 96
    NR = 16

    def take_pre():
        for i in range(3):
            for a_ in range(2):
                for e in range(2):
                    k(f'ds_read_b64_tr_b16 {v(PRE + 8 * i + 4 * a_ + 2 * e, 2)}, v{14 + a_} offset:{8192 * i + 512 * e}')
        for q in range(4):
            k(f'ds_read_b64_tr_b16 {v(RES + 2 * q, 2)}, v9 offset:{8192 * 3 + 256 * q}')
        k('s_waitcnt lgkmcnt(0)')

    k('s_cmp_eq_u32 s16, 15')
    k('s_cbranch_scc1 F_lstat')
    st()
    if OPT.get('dbgstart'):
        half(0)
        st()
        k('s_waitcnt vmcnt(4)')
        st()
        k('s_waitcnt vmcnt(3)')
        st()
        k('s_waitcnt vmcnt(0)')
        st()
        half(1); half(2)
        st()
        st.k = lambda x: None
    else:
        half(0); half(1); half(2)
    vm.wait(('h', 0))
    k('s_barrier')
    st()
    half(3)
    vm.wait(('h', 1))
    k('s_barrier')
    half(4); half(5)
    setup2()
    extra = {0: [lambda: pre(0)], 1: [lambda: pre(1)], 2: [lambda: pre(2)], 3: [res],
             4: [lambda: grp(4)],
             5: [lambda: vm.wait(('p', 3)), take_pre] + [lambda m=m: grp(m) for m in (0, 1, 2, 3, 5)],
             6: [lambda m=m: grp(m) for m in (6, 7, 8, 9, 10)],
             7: [lambda m=m: grp(m) for m in range(11, 20)]}
    for c in range(8):
        if c < 7:
            vm.wait(('h', 2 * c + 3))
        k('s_barrier')
        if c in (0, 4, 7):
            st()
        if c + 3 <= 7:
            half(2 * c + 6); half(2 * c + 7)
        for f in extra[c]:
            f()
    k('s_branch F_g2')
    k('F_lstat:')
    setup2()
    k('s_barrier')
    vm.seq = []
    for i in range(3):
        pre(i)
    res()
    for m in range(4, 20):
        grp(m)
    vm.wait(('p', 3))
    take_pre()
    for m in range(4):
        grp(m)
    k('F_g2:')
    st()
    k(f's_mov_b32 s63, {SPIN}')
    k('s_mov_b64 exec, 0x7fff')
    k('F_poll:')
    k(f'buffer_load_dword v8, v13, s[40:43], s59 offen {OPT.get("pfl", "sc1")}')
    k('s_waitcnt vmcnt(0)')
    k('v_cmp_eq_u32 vcc, 0, v8')
    k('s_cbranch_vccz F_got')
    if OPT.get('psleep'):
        k(f's_sleep {OPT["psleep"]}')
    k('s_sub_u32 s63, s63, 1')
    k('s_cbranch_scc0 F_poll')
    k('F_got:')
    k('s_mov_b64 exec, -1')
    st()
    vm.seq = []

    def hload(j):
        out = [f'buffer_load_dwordx4 {v(HB + 4 * (j % NR), 4)}, v2, s[36:39], s57 offen offset:{1024 * (j & 3)} sc1']
        if j & 3 == 3:
            out.append('s_add_u32 s57, s57, 4096')
        return out

    cur_region = [3]

    def reads(j):
        m, own = (j - 3) >> 1, (j - 3) & 1
        out = []
        rg = REGION_OF[m // 5]
        if rg != cur_region[0]:
            d = (rg - cur_region[0]) * RG
            for r in (10, 11):
                out.append(f'v_add_u32 v{r}, {hex(d & 0xffffffff)}, v{r}')
            cur_region[0] = rg
        b = AF[j & 1]
        for a_ in range(2):
            for e in range(2):
                out.append(f'ds_read_b64_tr_b16 {v(b + 4 * a_ + 2 * e, 2)}, v{10 + a_} offset:{8192 * (m % 5) + 2048 * own + 512 * e}')
        return out

    AHEAD = 12
    for j in range(AHEAD):
        for x in hload(j):
            k(x)
        vm.add(j)
    k('s_barrier')
    for j in range(43):
        if j in (1, 22):
            st()
        vm.wait(j)
        if j >= 3:
            k('s_waitcnt lgkmcnt(0)')
        if j == 24:
            k('s_barrier')
        b = PRE + 8 * j if j < 3 else AF[j & 1]
        f0 = reads(j + 1) if 3 <= j + 1 < 43 else []
        f1 = []
        if j + AHEAD < 43:
            f1 = hload(j + AHEAD)
            vm.add(j + AHEAD)
        for a_, fill in ((0, f0), (1, f1)):
            acc = v(ACC + 16 * a_, 16)
            k(f'v_mfma_f32_32x32x16_bf16 {acc}, {v(b + 4 * a_, 4)}, {v(HB + 4 * (j % NR), 4)}, {"0" if j == 0 else acc}')
            for x in fill:
                k(x)
    st()
    k('s_lshl_b32 s60, s17, 12')
    k(f's_add_u32 s60, s60, {3 * RG}')
    k('v_add_u32 v14, s60, v2')
    k('s_xor_b32 s60, s17, 2')
    k('s_lshl_b32 s60, s60, 12')
    k(f's_add_u32 s60, s60, {3 * RG}')
    k('v_add_u32 v15, s60, v2')
    for q in range(4):
        k(f'ds_write_b128 v14, {v(ACC + 16 + 4 * q, 4)} offset:{1024 * q}')
    for q in range(8):
        k(f'v_lshlrev_b32 v{PRE + 2 * q}, 16, v{RES + q}')
        k(f'v_and_b32 v{PRE + 2 * q + 1}, 0xffff0000, v{RES + q}')
    for j in range(0, 16, 2):
        k(f'v_pk_add_f32 {v(ACC + j, 2)}, {v(ACC + j, 2)}, {v(PRE + j, 2)}')
    k('s_waitcnt lgkmcnt(0)')
    k('s_barrier')
    for q in range(4):
        k(f'ds_read_b128 {v(HB + 4 * q, 4)}, v15 offset:{1024 * q}')
    for q in range(4):
        k(f's_waitcnt lgkmcnt({3 - q})')
        for j in (0, 2):
            k(f'v_pk_add_f32 {v(ACC + 4 * q + j, 2)}, {v(ACC + 4 * q + j, 2)}, {v(HB + 4 * q + j, 2)}')
        for j in (0, 1):
            k(f'v_cvt_pk_bf16_f32 v{RES + 2 * q + j}, v{ACC + 4 * q + 2 * j}, v{ACC + 4 * q + 2 * j + 1}')
        if q & 1:
            k(f'buffer_store_dwordx4 {v(RES + 2 * q - 2, 4)}, v12, s[32:35], s58 offen offset:{8 * (q - 1)}')
    k('s_branch F_end')


def compute(k, st):
    k('s_setprio 2')
    k('s_bfe_u32 s36, s17, 0x10001')
    k('s_and_b32 s37, s17, 1')
    k('s_getreg_b32 s46, hwreg(HW_REG_XCC_ID, 0, 4)')
    k('s_add_u32 s46, s46, 1')
    k('s_waitcnt lgkmcnt(0)')
    srd(k, 28, 14, 0x10000)
    k('s_lshl_b32 s47, s3, 7')
    k(f's_add_u32 s47, s47, {WS_DIE}')
    k('s_cmp_lg_u32 s17, 4')
    k('s_cbranch_scc1 F_noann')
    k('s_lshl_b32 s44, s16, 2')
    k('s_add_u32 s44, s44, s47')
    k('v_mov_b32 v4, s46')
    k('s_mov_b64 exec, 1')
    k('buffer_store_dword v4, off, s[28:31], s44 sc1')
    k('s_mov_b64 exec, -1')
    k('F_noann:')
    k('s_cmp_eq_u32 s16, 15')
    k('s_cbranch_scc1 F_stat')
    srd(k, 24, 14, H_BYTES, WS_H)
    k('s_mul_i32 s38, s16, 6')
    k('s_mul_i32 s39, s37, 3')
    k('s_add_u32 s38, s38, s39')
    k('s_lshl_b32 s39, s38, 7')
    k(f's_add_u32 s39, s39, {WS_SFR}')
    SF = 20
    k('v_lshlrev_b32 v6, 2, v1')
    for i in range(12):
        k(f'v_mov_b32 v{SF + i}, 0')
    k('s_mov_b32 exec_hi, 0')
    for u in range(3):
        k(f'buffer_load_dword v{SF + 4 * u}, v6, s[28:31], s39 offen offset:{128 * u}')
    k('s_mov_b64 exec, -1')
    k('v_lshrrev_b32 v6, 5, v1')
    k('v_bfe_u32 v7, v1, 2, 2')
    k('v_lshl_add_u32 v6, v6, 3, v7')
    k('v_bfe_u32 v7, v1, 4, 1')
    k('v_and_b32 v8, 3, v1')
    k('v_lshlrev_b32 v9, 6, v6')
    k('v_lshl_add_u32 v9, v7, 5, v9')
    k('v_lshl_add_u32 v9, v8, 3, v9')
    k('v_lshl_add_u32 v10, s36, 13, v9')
    k('v_lshlrev_b32 v9, 1, v8')
    k('v_lshrrev_b32 v8, 1, v8')
    k('v_or_b32 v8, v8, v9')
    k('v_and_b32 v8, 3, v8')
    k('v_mul_u32_u24 v9, 192, v6')
    k('v_lshl_add_u32 v9, v8, 3, v9')
    k(f'v_mul_u32_u24 v8, {UOFF - GOFF}, v7')
    k(f'v_add_u32 v8, {GOFF}, v8')
    k('v_add_u32 v9, v9, v8')
    k('s_mul_i32 s40, s37, 3')
    for u in range(3):
        k(f's_add_u32 s41, s40, {u}')
        k('v_xor_b32 v8, s41, v7')
        k(f'v_lshl_add_u32 v{11 + u}, v8, 5, v9')
    for r in range(4):
        k(f'v_add_u32 v{14 + r}, {2 * RG}, v{10 + r}')
    k('v_and_b32 v18, 31, v1')
    k('v_lshlrev_b32 v18, 2, v18')
    k('v_and_b32 v33, 60, v18')
    k('s_lshl_b32 s40, s3, 1')
    k('s_add_u32 s40, s40, s36')
    k('s_lshl_b32 s48, s40, 8')
    k(f's_add_u32 s48, s48, {WS_ST2}')
    k('s_lshl_b32 s49, s40, 7')
    k('s_lshl_b32 s41, s16, 3')
    k('s_add_u32 s49, s49, s41')
    k('s_lshl_b32 s41, s37, 2')
    k('s_add_u32 s49, s49, s41')
    k(f's_add_u32 s49, s49, {WS_FLG}')
    k('s_mul_i32 s40, s40, 172')
    k('s_add_u32 s40, s40, s38')
    k('s_lshl_b32 s40, s40, 10')
    k(f's_add_u32 s41, s40, {86 * 1024}')
    FR = [36, 56]
    ACC = 76

    def reads(c, ks):
        stg = c % 3
        b = FR[ks & 1]
        base = 14 if stg == 2 else 10
        so = RG if stg == 1 else 0
        out = []
        for nm in ('B0', 'A0', 'B1', 'A1', 'A2'):
            idx = int(nm[1])
            for e in range(2):
                if nm[0] == 'A':
                    out.append(f'ds_read_b64_tr_b16 {v(b + 4 * idx + 2 * e, 2)}, v{base + 1 + idx} offset:{so + ks * 3072 + e * 768}')
                else:
                    out.append(f'ds_read_b64_tr_b16 {v(b + 12 + 4 * idx + 2 * e, 2)}, v{base} offset:{so + idx * 4096 + ks * 1024 + e * 256}')
        return out

    late = ['buffer_load_dword v34, v18, s[28:31], s48 offen sc1', 'buffer_load_dword v35, v18, s[28:31], s48 offen offset:128 sc1',
            'buffer_load_dword v32, v33, s[28:31], s47 offen sc1']
    st()
    k('s_barrier')
    st()
    for x in reads(0, 0):
        k(x)
    for c in range(8):
        for ks in range(4):
            b = FR[ks & 1]
            k('s_waitcnt lgkmcnt(0)')
            if ks == 3 or (c == 0 and ks == 1):
                k('s_barrier')
                if ks == 3 and c in (0, 4, 7):
                    st()
            fill = reads(c, ks + 1) if ks < 3 else (reads(c + 1, 0) if c < 7 else [])
            for u in range(3):
                for i in range(2):
                    acc = v(ACC + 16 * (2 * u + i), 16)
                    src = '0' if (c == 0 and ks == 0) else acc
                    k(f'v_mfma_f32_32x32x16_bf16 {acc}, {v(b + 4 * u, 4)}, {v(b + 12 + 4 * i, 4)}, {src}')
                    for x in fill[:3]:
                        k(x)
                    fill = fill[3:]
                    if c == 7 and ks == 0 and u == 2:
                        k(late[i])
                    if c == 7 and ks == 1 and u == 2 and i == 0:
                        k(late[2])
    MB, SG, CR = 36, 44, 48
    for i in range(2):
        for j in range(1, 4):
            k(f'v_mov_b32 v{MB + 4 * i + j}, 0')
    k(f's_mov_b32 s50, {SPIN}')
    k('s_mov_b32 s43, 0x01000100')
    k('F_spoll:')
    k('s_waitcnt vmcnt(0)')
    k('v_min_u32 v19, v34, v35')
    k('v_cmp_eq_u32 vcc, 0, v19')
    k('s_cbranch_vccz F_sgot')
    k(late[0])
    k(late[1])
    k('s_sub_u32 s50, s50, 1')
    k('s_cbranch_scc0 F_spoll')
    k('s_waitcnt vmcnt(0)')
    k('F_sgot:')
    for i in range(2):
        k(f'v_perm_b32 v{MB + 4 * i}, v{34 + i}, v{34 + i}, s43')
    for u in range(3):
        for i in range(2):
            acc = v(ACC + 16 * (2 * u + i), 16)
            k(f'v_mfma_f32_32x32x16_bf16 {acc}, {v(SF + 4 * u, 4)}, {v(MB + 4 * i, 4)}, {acc}')
            if u == 0:
                k(f'v_and_b32 v{SG + 2 * i}, 0xffff0000, v{34 + i}')
                k(f'v_rcp_f32 v{CR + 2 * i}, v{SG + 2 * i}')
                k(f'v_mul_f32 v{CR + 2 * i}, {hex(LOG2E | 0x80000000)}, v{CR + 2 * i}')
    k('v_cmp_ne_u32 s[44:45], s46, v32')
    st()
    for u in range(3):
        k(f's_add_u32 s42, s38, {u}')
        k('s_cmp_ge_u32 s42, 86')
        k('s_cbranch_scc1 F_pub')
        for i in range(2):
            b = ACC + 16 * (2 * u + i)
            for j in range(0, 8, 2):
                k(f'v_pk_mul_f32 {v(b + j, 2)}, {v(b + j, 2)}, {v(CR + 2 * i, 2)} op_sel_hi:[1,0]')
            for j in range(8):
                k(f'v_exp_f32 v{b + j}, v{b + j}')
            for j in range(0, 8, 2):
                k(f'v_pk_fma_f32 {v(b + j, 2)}, {v(b + j, 2)}, {v(SG + 2 * i, 2)}, {v(SG + 2 * i, 2)} op_sel_hi:[1,0,0]')
            for j in range(8):
                k(f'v_rcp_f32 v{b + j}, v{b + j}')
            for j in range(0, 8, 2):
                k(f'v_pk_mul_f32 {v(b + j, 2)}, {v(b + j, 2)}, {v(b + 8 + j, 2)}')
            for j in range(4):
                k(f'v_cvt_pk_bf16_f32 v{b + 8 + j}, v{b + 2 * j}, v{b + 2 * j + 1}')
            k(f'buffer_store_dwordx4 {v(b + 8, 4)}, v2, s[24:27], s{40 + i} offen offset:{1024 * u}')
    k('F_pub:')
    st()
    k('v_mov_b32 v4, 1')
    k('s_mov_b64 exec, 1')
    k('s_cmp_eq_u64 s[44:45], 0')
    k('s_waitcnt vmcnt(0)')
    k('s_cbranch_scc1 F_near')
    k('buffer_wbl2 sc1')
    k('s_waitcnt vmcnt(0)')
    k('buffer_store_dword v4, off, s[28:31], s49 sc1')
    k('s_branch F_end')
    k('F_near:')
    k('buffer_store_dword v4, off, s[28:31], s49')
    k('s_branch F_end')
    k('F_stat:')
    srd(k, 20, 14, 0x200000, WS_HT)
    k('s_lshl_b32 s40, s3, 2')
    k('s_and_b32 s41, s17, 3')
    k('s_add_u32 s40, s40, s41')
    k('s_lshl_b32 s41, s40, 15')
    L, S, Q, T = 40, 8, 16, 24
    for j in range(32):
        k(f'buffer_load_dwordx4 {v(L + 4 * j, 4)}, v2, s[20:23], s41 offen offset:{1024 * (j & 3)}')
        if j & 3 == 3:
            k('s_add_u32 s41, s41, 4096')
    k('s_barrier')
    for i in range(16):
        k(f'v_mov_b32 v{S + i}, 0')
    for j in range(32):
        k(f's_waitcnt vmcnt({31 - j})')
        for i in range(4):
            k(f'v_lshlrev_b32 v{T + 2 * i}, 16, v{L + 4 * j + i}')
            k(f'v_and_b32 v{T + 2 * i + 1}, 0xffff0000, v{L + 4 * j + i}')
        for i in range(0, 8, 2):
            k(f'v_pk_add_f32 {v(S + i, 2)}, {v(S + i, 2)}, {v(T + i, 2)}')
            k(f'v_pk_fma_f32 {v(Q + i, 2)}, {v(T + i, 2)}, {v(T + i, 2)}, {v(Q + i, 2)}')
    for e in range(8):
        k(f'v_permlane32_swap_b32 v{S + e}, v{Q + e}')
    for e in range(8):
        k(f'v_add_f32 v{S + e}, v{S + e}, v{Q + e}')
    for e in range(4):
        k(f'v_permlane16_swap_b32 v{S + e}, v{S + 4 + e}')
    for e in range(4):
        k(f'v_add_f32 v{S + e}, v{S + e}, v{S + 4 + e}')
    for e in range(2):
        k(f'v_add_f32_dpp v{S + e}, v{S + e}, v{S + e} row_ror:8 row_mask:0xf bank_mask:0x3')
    for e in range(2):
        k(f'v_add_f32_dpp v{S + e}, v{S + 2 + e}, v{S + 2 + e} row_ror:8 row_mask:0xf bank_mask:0xc')
    k(f'v_add_f32_dpp v{S}, v{S}, v{S} row_shl:4 row_mask:0xf bank_mask:0x5')
    k(f'v_add_f32_dpp v{S}, v{S + 1}, v{S + 1} row_shr:4 row_mask:0xf bank_mask:0xa')
    k(f'v_mul_f32 v16, 0x3b000000, v{S}')
    k('v_mov_b32 v17, v16')
    k('v_permlane32_swap_b32 v16, v17')
    k('v_fma_f32 v17, -v16, v16, v17')
    k('v_max_f32 v17, 0, v17')
    bf16round(k, 17, 'v17')
    k('v_add_f32 v17, 0x3727c5ac, v17')
    bf16round(k, 17, 'v17')
    k('v_sqrt_f32 v17, v17')
    k('v_and_b32 v5, 3, v1')
    k('v_and_b32 v6, 28, v1')
    k('v_lshl_add_u32 v5, v5, 5, v6')
    k('v_cvt_pk_bf16_f32 v16, -v16, v17')
    k('s_lshl_b32 s40, s40, 7')
    k(f's_add_u32 s40, s40, {WS_ST2}')
    k('s_mov_b32 exec_hi, 0')
    k('buffer_store_dword v16, v5, s[28:31], s40 offen sc1')


def new_ffn():
    return f'; @launch kernel=ffn_kernel grid=(256,1,1) block=(512,1,1) lds={F_LDS}\n', kern_f()


if __name__ == '__main__':
    if '--diag' in sys.argv:
        v1.DIAG = True
        sys.argv.remove('--diag')
    main(sys.argv[1], new_ffn)
```

```python
import sys, struct
import v1
from v1 import (NAME, HEADER, A_U, A_LAR, A_AIM, A_CR, A_CI, A_LDT, A_DSK, W_G, W_U, W_D, D_OUT, D_DBG, D_WS,
                LOG2E, INV2PI, srd, bf16round, allreduce, cmul, Stamps)
from asmlib import *

WS_STAT = 0
WS_SFR = 0x20000
WS_ST2 = 0x8000
WS_FLG = 0xA000
WS_DIE = 0xB000
WS_HT = 0x100000
WS_H = 0x400000
WS_T = 0xA00000
H_BYTES = 64 * 86 * 1024
OPT = dict(t_st='', h_st='', npre=6, code=1, pages=1, wt=0, late=0, hz=1, hzfl='sc1', early=1, plist='G0,U0,D0,D1,D2,D3,D4,D5')
for a_ in list(sys.argv):
    if '=' in a_:
        n_, x_ = a_.split('=')
        OPT[n_] = int(x_) if x_.isdigit() else x_.replace('+', ' ')
        sys.argv.remove(a_)


def f32(x):
    return hex(struct.unpack('<I', struct.pack('<f', x))[0])


def fin(name, k, vg, sg):
    k.fix()
    return kernel_text(name, k.text(), 256 if v1.DIAG else vg, 100 if v1.DIAG else sg)


def kern_a():
    k = Asm()
    k('s_cmp_ge_u32 s2, 256')
    k('s_cbranch_scc1 A_exit')
    st = Stamps(k, 0)
    k(f's_load_dwordx16 s[4:19], s[0:1], {A_U}')
    k(f's_load_dwordx4 s[20:23], s[0:1], {W_G}')
    k(f's_load_dwordx2 s[24:25], s[0:1], {W_D}')
    k(f's_load_dwordx2 s[26:27], s[0:1], {D_WS}')
    if OPT['code']:
        k('s_getpc_b64 s[50:51]')
        k('A_pc:')
        k('s_lshr_b32 s52, s2, 3')
        k('s_lshl_b32 s52, s52, 11')
        k('v_and_b32 v44, 15, v0')
        k('v_lshl_add_u32 v44, v44, 7, s52')
        k('v_min_u32 v44, code_end-A_pc-4, v44')
        k('v_cmp_gt_u32 vcc, 16, v0')
        k('s_and_saveexec_b64 s[54:55], vcc')
        k('s_cbranch_execz A_nocode')
        k('global_load_dword v45, v44, s[50:51]')
        k('A_nocode:')
        k('s_mov_b64 exec, s[54:55]')
    k('v_lshlrev_b32 v1, 2, v0')
    k('v_lshlrev_b32 v2, 5, v0')
    k('v_lshrrev_b32 v3, 6, v0')
    k('v_and_b32 v4, 63, v0')
    k('v_readfirstlane_b32 s28, v3')
    k('s_lshl_b32 s3, s2, 13')
    k('s_add_u32 s29, s3, 4096')
    k('s_and_b32 s30, s2, 7')
    k('s_lshl_b32 s30, s30, 5')
    k('s_lshr_b32 s31, s2, 3')
    k('s_add_u32 s30, s30, s31')
    k('s_lshl_b32 s30, s30, 9')
    k('s_mul_i32 s31, s2, 5504')
    k('v_lshlrev_b32 v5, 7, v4')
    k('v_add_u32 v6, s30, v5')
    k('v_add_u32 v5, s31, v5')
    k('s_mov_b32 s48, 0x3f803f80')
    k('s_waitcnt lgkmcnt(0)')
    srd(k, 32, 4, 2048 * 1024)
    for e in range(8):
        k(f'buffer_load_dword v{8 + e}, v1, s[32:35], s{3 if e < 4 else 29} offen offset:{(e & 3) * 1024}')
    srd(k, 36, 26, 0x200000, WS_T)
    srd(k, 40, 26, 0x10000)
    k('s_cmp_eq_u32 s28, 1')
    k('s_cselect_b64 s[44:45], s[8:9], s[6:7]')
    k('s_cselect_b64 s[46:47], s[22:23], s[20:21]')
    k('s_cmp_eq_u32 s28, 2')
    k('s_cselect_b64 s[44:45], s[10:11], s[44:45]')
    k('s_cselect_b64 s[46:47], s[24:25], s[46:47]')
    k('s_cmp_eq_u32 s28, 3')
    k('s_cselect_b64 s[44:45], s[12:13], s[44:45]')
    k('s_mov_b64 exec, 15')
    k('global_load_dword v40, v6, s[44:45]')
    k('s_cbranch_scc1 A_w3')
    k(f's_mov_b32 exec_lo, {-1 if OPT["wt"] else 1}')
    k(f's_mov_b32 exec_hi, {0x7ff if OPT["wt"] else 0}')
    k('global_load_dword v41, v5, s[46:47]')
    k('s_mov_b64 exec, -1')
    k('s_waitcnt vmcnt(2)')
    k('s_branch A_go')
    k('A_w3:')
    if OPT['pages']:
        k('v_lshlrev_b32 v5, 20, v4')
        k('s_mov_b64 exec, 0xfff')
        k('global_load_dword v41, v5, s[26:27]')
        k('s_mov_b64 exec, 0xff')
        k('v_lshlrev_b32 v5, 7, v4')
        k('global_load_dword v42, v5, s[14:15]')
        k('global_load_dword v43, v5, s[16:17]')
    k('s_mov_b64 exec, -1')
    k(f's_waitcnt vmcnt({4 if OPT["pages"] else 1})')
    k('A_go:')
    st()
    k(f'buffer_store_dwordx4 v[8:11], v2, s[36:39], s3 offen {OPT["t_st"]}')
    k(f'buffer_store_dwordx4 v[12:15], v2, s[36:39], s3 offen offset:16 {OPT["t_st"]}')
    S, Q = 16, 24
    for e in range(8):
        k(f'v_dot2_f32_bf16 v{S + e}, v{8 + e}, s48, 0')
        k(f'v_dot2_f32_bf16 v{Q + e}, v{8 + e}, v{8 + e}, 0')
    for e in range(8):
        k(f'v_permlane32_swap_b32 v{S + e}, v{Q + e}')
    for e in range(8):
        k(f'v_add_f32 v{S + e}, v{S + e}, v{Q + e}')
    for e in range(4):
        k(f'v_permlane16_swap_b32 v{S + e}, v{S + 4 + e}')
    for e in range(4):
        k(f'v_add_f32 v{S + e}, v{S + e}, v{S + 4 + e}')
    for e in range(2):
        k(f'v_add_f32_dpp v{S + e}, v{S + e}, v{S + e} row_ror:8 row_mask:0xf bank_mask:0x3')
    for e in range(2):
        k(f'v_add_f32_dpp v{S + e}, v{S + 2 + e}, v{S + 2 + e} row_ror:8 row_mask:0xf bank_mask:0xc')
    k(f'v_add_f32_dpp v{S}, v{S}, v{S} row_half_mirror row_mask:0xf bank_mask:0x5')
    k(f'v_add_f32_dpp v{S}, v{S + 1}, v{S + 1} row_half_mirror row_mask:0xf bank_mask:0xa')
    k(f'v_add_f32_dpp v{S}, v{S}, v{S} quad_perm:[1,0,3,2] row_mask:0xf bank_mask:0xf')
    k(f'v_add_f32_dpp v{S}, v{S}, v{S} quad_perm:[2,3,0,1] row_mask:0xf bank_mask:0xf')
    k(f'ds_write_b32 v1, v{S}')
    k('s_cmp_ge_u32 s2, 4')
    k('s_cbranch_scc1 A_noclr')
    for i in range(4):
        k(f'v_mov_b32 v{32 + i}, 0')
    k('v_lshlrev_b32 v7, 4, v0')
    k('s_lshl_b32 s30, s2, 12')
    k(f's_add_u32 s30, s30, {WS_ST2}')
    k('buffer_store_dwordx4 v[32:35], v7, s[40:43], s30 offen')
    k('A_noclr:')
    st()
    k('s_waitcnt lgkmcnt(0)')
    k('s_barrier')
    st()
    if v1.DIAG:
        k('s_waitcnt vmcnt(2)')
        st()
    k('s_cmp_lg_u32 s28, 0')
    k('s_cbranch_scc1 A_end')
    k('ds_read2st64_b32 v[16:17], v1 offset0:0 offset1:1')
    k('ds_read2st64_b32 v[18:19], v1 offset0:2 offset1:3')
    k('v_bfe_u32 v5, v0, 4, 1')
    k('v_lshlrev_b32 v5, 5, v5')
    k('v_lshrrev_b32 v6, 5, v0')
    k('v_lshl_add_u32 v5, v6, 4, v5')
    k('v_and_b32 v6, 12, v0')
    k('v_add_u32 v5, v5, v6')
    k('s_lshl_b32 s30, s2, 6')
    k('v_cmp_gt_u32 vcc, 32, v0')
    k('s_waitcnt lgkmcnt(0)')
    k('v_add_f32 v16, v16, v17')
    k('v_add_f32 v18, v18, v19')
    k('v_add_f32 v16, v16, v18')
    k('v_mul_f32 v16, 0x3b000000, v16')
    k('v_mov_b32 v17, v16')
    k('v_permlane32_swap_b32 v16, v17')
    k('v_fma_f32 v17, -v16, v16, v17')
    k('v_max_f32 v17, 0, v17')
    bf16round(k, 17, 'v17')
    k('v_add_f32 v17, 0x3727c5ac, v17')
    bf16round(k, 17, 'v17')
    k('v_sqrt_f32 v17, v17')
    k('v_cvt_pk_bf16_f32 v16, -v16, v17')
    k('v_and_b32 v17, 0xffff0000, v16')
    k('v_lshlrev_b32 v16, 16, v16')
    k('v_rcp_f32 v17, v17')
    k('v_mul_f32 v16, v16, v17')
    k('v_cndmask_b32 v16, v16, v17, vcc')
    k('s_mov_b32 exec_lo, 0x11111111')
    k('s_mov_b32 exec_hi, 0x11111111')
    k('buffer_store_dword v16, v5, s[40:43], s30 offen')
    k('A_end:')
    st.finish()
    if OPT['late']:
        k('s_cmp_eq_u32 s28, 3')
        k('s_cbranch_scc1 A_exit')
        k('s_mov_b32 exec_lo, -1')
        k('s_mov_b32 exec_hi, 0x7ff')
        k('v_lshlrev_b32 v5, 7, v4')
        k('v_add_u32 v5, s31, v5')
        k('global_load_dword v41, v5, s[46:47]')
    k('A_exit:')
    k('s_endpgm')
    return fin('prep_kernel', k, 48, 56)


TA, TF = 0, 50688
KC = TF + 16896 + 16
KC_CH = 1568
KE = KC - 16 + 2 * KC_CH
UB = KE + 2 * 8320
B_LDS = UB + 2 * 4608
RED, ZB, CS = 0, 16384, 32768


def kern_b():
    k = Asm()
    k('s_cmp_ge_u32 s2, 256')
    k('s_cbranch_scc1 B_exit')
    st = Stamps(k, 1)
    k(f's_load_dwordx8 s[4:11], s[0:1], {A_LAR}')
    k(f's_load_dwordx4 s[12:15], s[0:1], {A_LDT}')
    k(f's_load_dwordx2 s[18:19], s[0:1], {D_WS}')
    k(f's_load_dwordx4 s[24:27], s[0:1], {W_G}')
    k(f's_load_dwordx2 s[16:17], s[0:1], {W_D}')
    k('s_and_b32 s3, s2, 7')
    k('s_lshl_b32 s3, s3, 5')
    k('s_lshr_b32 s20, s2, 3')
    k('s_add_u32 s3, s3, s20')
    k('s_lshl_b32 s20, s3, 2')
    k('s_lshl_b32 s21, s3, 9')
    k('s_lshl_b32 s28, s3, 5')
    k('v_and_b32 v33, 255, v0')
    k('v_lshl_add_u32 v1, v33, 1, s21')
    k('v_lshrrev_b32 v2, 1, v0')
    k('v_lshlrev_b32 v2, 13, v2')
    k('v_and_b32 v3, 1, v0')
    k('v_lshl_add_u32 v2, v3, 4, v2')
    k('v_lshlrev_b32 v3, 5, v0')
    k('v_lshrrev_b32 v34, 6, v0')
    k('v_readfirstlane_b32 s60, v34')
    k('s_lshr_b32 s59, s60, 2')
    k('s_bfe_u32 s61, s60, 0x10001')
    k('s_and_b32 s62, s60, 1')
    k('v_lshlrev_b32 v34, 3, v33')
    k('v_sub_u32 v34, 2047, v34')
    k('v_cvt_f32_u32 v35, v34')
    k(f's_mul_i32 s63, s59, {KC_CH}')
    k('v_mov_b32 v36, s63')
    k('s_add_u32 s63, s63, 0x8500')
    k('v_lshl_add_u32 v34, v34, 1, s63')
    k('v_cmp_lt_u32 vcc, 231, v33')
    for e in range(0, 9, 2):
        k(f'v_subrev_f32 v37, {f32(e)}, v35')
        k(f'v_subrev_f32 v38, {f32(e + 1)}, v35')
        k('v_cvt_pk_bf16_f32 v37, v37, v38')
        for h in range(2):
            if e + h < 9:
                k(f'v_mad_u32_u16 v{24 + e + h}, v37, 2, v36 op_sel:[{h},0,0,0]')
                k(f'v_subrev_u32 v38, {2 * (e + h)}, v34')
                k(f'v_cndmask_b32 v{24 + e + h}, v{24 + e + h}, v38, vcc')
    k('v_mov_b32 v34, 0')
    k('v_lshlrev_b32 v35, 2, v33')
    k('s_mul_i32 s63, s59, 4608')
    k(f's_add_u32 s63, s63, {UB}')
    k('v_add_u32 v36, s63, v35')
    k('v_cmp_gt_u32 vcc, 120, v33')
    k('s_and_saveexec_b64 s[54:55], vcc')
    k('ds_write_b32 v36, v34')
    k('s_mov_b64 exec, s[54:55]')
    k('s_mul_i32 s63, s59, 8320')
    k(f's_add_u32 s63, s63, {KE + 4096}')
    k('v_add_u32 v36, s63, v35')
    k(f's_mul_i32 s63, s59, {KC_CH}')
    k(f's_add_u32 s63, s63, {KC - 4}')
    k('v_mov_b32 v37, s63')
    k('v_cmp_gt_u32 vcc, 16, v33')
    k('s_and_saveexec_b64 s[54:55], vcc')
    k('ds_write_b32 v36, v34')
    k('ds_write_b32 v36, v34 offset:4160')
    k('ds_write_b32 v37, v34')
    k('s_mov_b64 exec, s[54:55]')
    k('v_and_b32 v36, 15, v0')
    k('v_bfe_u32 v37, v0, 4, 2')
    k('v_and_b32 v38, 1, v37')
    k('v_lshrrev_b32 v39, 1, v37')
    k('v_lshlrev_b32 v20, 8, v38')
    k('v_lshl_add_u32 v20, v39, 7, v20')
    k('v_mul_u32_u24 v21, 528, v36')
    k('v_add_u32 v20, v20, v21')
    k('s_lshr_b32 s57, s60, 1')
    k(f's_mul_i32 s63, s62, {16 * 528}')
    k(f's_add_u32 s63, s63, {TF}')
    k(f's_mul_i32 s64, s62, {48 * 528}')
    k(f's_mul_i32 s58, s57, {16 * 528}')
    k('s_add_u32 s64, s64, s58')
    k('s_cmp_eq_u32 s57, 2')
    k('s_cselect_b32 s58, s63, s64')
    k('s_cselect_b32 s63, s64, s63')
    k('v_add_u32 v21, s63, v20')
    k('v_add_u32 v20, s58, v20')
    k('v_lshlrev_b32 v22, 7, v39')
    k('v_lshl_add_u32 v22, v38, 2, v22')
    k('v_lshl_add_u32 v22, v36, 3, v22')
    k('v_mov_b32 v23, 2')
    k('s_cmp_eq_u32 s57, 0')
    k('s_cbranch_scc1 B_ka')
    k('v_lshlrev_b32 v22, 4, v36')
    k('v_lshl_add_u32 v22, v37, 2, v22')
    k('v_add_u32 v22, 512, v22')
    k('s_cmp_eq_u32 s57, 2')
    k('s_cbranch_scc1 B_ka')
    k('v_sub_u32 v22, 2, v39')
    k('v_lshlrev_b32 v22, v22, v36')
    k('v_lshl_add_u32 v22, v37, 6, v22')
    k('v_add_u32 v22, 256, v22')
    k('v_mad_u32_u24 v23, v39, 30, 2')
    k('B_ka:')
    k('v_add_u32 v23, v22, v23')
    k(f's_mul_i32 s63, s62, {KC_CH}')
    k(f's_add_u32 s63, s63, {KC}')
    k('v_lshl_add_u32 v22, v22, 1, s63')
    k('v_lshl_add_u32 v23, v23, 1, s63')
    k(f's_mul_i32 s63, s61, {48 * 528}')
    k('s_lshl_b32 s64, s62, 8')
    k('s_add_u32 s52, s63, s64')
    k(f's_mul_i32 s63, s61, {16 * 528}')
    k('s_add_u32 s53, s63, s64')
    st()
    k('s_waitcnt lgkmcnt(0)')
    for i in range(4):
        k(f'global_load_ushort v{4 + i}, v1, s[{4 + 2 * i}:{5 + 2 * i}]')
    k('s_load_dword s22, s[12:13], s20')
    k('s_load_dword s23, s[14:15], s20')
    srd(k, 40, 18, 0x200000, WS_T)
    srd(k, 44, 18, 0x40000)
    srd(k, 48, 18, 0x200000, WS_HT)
    st()
    k('v_and_b32 v42, 63, v0')
    k('s_lshr_b32 s35, s2, 3')
    k('s_lshl_b32 s35, s35, 13')
    k('v_lshl_add_u32 v205, v42, 7, s35')
    k('s_and_b32 s35, s60, 3')
    PL = OPT['plist'].split(',')

    def prefetch(r):
        items = PL[4 * r:4 * r + 4]
        reg = dict(G=24, U=26, D=16)
        for i, it in enumerate(items):
            b_, o_ = reg[it[0]], int(it[1]) << 18
            if i == 0:
                k(f's_mov_b64 s[32:33], s[{b_}:{b_ + 1}]')
                k(f's_mov_b32 s34, {o_}')
            else:
                k(f's_cmp_eq_u32 s35, {i}')
                k(f's_cselect_b64 s[32:33], s[{b_}:{b_ + 1}], s[32:33]')
                k(f's_cselect_b32 s34, {o_}, s34')
        k('v_add_u32 v206, s34, v205')
        k(f'v_min_u32 v206, {512 * 2752 - 128}, v206')
        k('global_load_dword v207, v206, s[32:33]')

    nround = len(PL) // 4
    ne = min(OPT['early'], nround)
    k('s_cmp_eq_u32 s59, 1')
    k('s_cbranch_scc1 B_cs')
    k('buffer_load_dwordx4 v[8:11], v2, s[40:43], s28 offen')
    k('buffer_load_dwordx4 v[12:15], v3, s[44:47], 0 offen')
    k('buffer_load_dwordx4 v[16:19], v3, s[44:47], 0 offen offset:16')
    k('s_waitcnt vmcnt(3)')
    k('s_branch B_cs2')
    k('B_cs:')
    k('s_cmp_ge_u32 s2, 86')
    k('s_cselect_b32 s29, 86, 0')
    k('s_cselect_b32 s30, 4, 0')
    k('s_sub_u32 s29, s2, s29')
    k('s_add_u32 s30, s30, s35')
    k('s_cmp_ge_u32 s29, 43')
    k('s_cselect_b32 s36, s26, s24')
    k('s_cselect_b32 s37, s27, s25')
    k('s_cselect_b32 s31, 43, 0')
    k('s_cselect_b32 s65, 256, 0')
    k(f's_mov_b32 s38, {512 * 2752}')
    k('s_mov_b32 s39, 0x20000')
    k('s_sub_u32 s29, s29, s31')
    k('v_lshrrev_b32 v40, 2, v42')
    k('v_mul_u32_u24 v40, 2752, v40')
    k('v_and_b32 v41, 3, v0')
    k('v_lshl_add_u32 v40, v41, 4, v40')
    k(f's_mul_i32 s31, s30, {64 * 2752}')
    k('s_lshl_b32 s63, s29, 6')
    k('s_add_u32 s31, s31, s63')
    k('s_cmp_ge_u32 s2, 172')
    k('s_cselect_b32 s31, 0x7fff0000, s31')
    k('buffer_load_dwordx4 v[8:11], v2, s[40:43], s28 offen')
    k('buffer_load_dwordx4 v[12:15], v3, s[44:47], 0 offen')
    k('buffer_load_dwordx4 v[16:19], v3, s[44:47], 0 offen offset:16')
    for i in range(4):
        k(f'buffer_load_dwordx4 {v(108 + 4 * i, 4)}, v40, s[36:39], s31 offen')
        if i < 3:
            k(f's_add_u32 s31, s31, {16 * 2752}')
    k('s_waitcnt vmcnt(7)')
    k('B_cs2:')
    st()
    k('s_waitcnt lgkmcnt(0)')
    k('s_lshl_b32 s63, s61, 4')
    k('s_lshr_b32 s63, s22, s63')
    k('s_lshl_b32 s63, s63, 16')
    k(f'v_mov_b32 v44, {hex(LOG2E)}')
    k('v_mul_f32 v44, s63, v44')
    k('v_exp_f32 v44, v44')
    bf16round(k, 44, 'v44')
    k(f'v_mul_f32 v45, {hex(INV2PI)}, v44')
    k('v_lshlrev_b32 v4, 16, v4')
    k('v_lshlrev_b32 v5, 16, v5')
    k(f'v_mul_f32 v4, {hex(LOG2E)}, v4')
    k('v_exp_f32 v4, v4')
    k('v_mul_f32 v5, v5, v45')
    bf16round(k, 4, 'v4')
    k('v_mul_f32 v4, v4, v44')
    k(f'v_mul_f32 v4, {hex(LOG2E | 0x80000000)}, v4')

    def direct(lst):
        for i, (d, p, conj) in enumerate(lst):
            k(f'v_mul_f32 v{88 + 2 * i}, {f32(p)}, v4')
            k(f'v_mul_f32 v{89 + 2 * i}, {f32(p)}, v5')
        for i, (d, p, conj) in enumerate(lst):
            k(f'v_fract_f32 v{89 + 2 * i}, v{89 + 2 * i}')
            k(f'v_exp_f32 v{88 + 2 * i}, v{88 + 2 * i}')
        for i, (d, p, conj) in enumerate(lst):
            k(f'v_cos_f32 v{d}, v{89 + 2 * i}')
            k(f'v_sin_f32 v{d + 1}, v{89 + 2 * i}')
        for i, (d, p, conj) in enumerate(lst):
            neg = ' neg_hi:[1,0]' if conj else ''
            k(f'v_pk_mul_f32 {v(d, 2)}, {v(d, 2)}, {v(88 + 2 * i, 2)} op_sel_hi:[1,0]{neg}')

    pk = [84, 85, 86, 87]
    cnt = [0]

    def put(off, src):
        r = pk[cnt[0] % 4]
        cnt[0] += 1
        k(f'v_cvt_pk_bf16_f32 v{r}, v{src}, v{src + 1}')
        k(f'ds_write_addtid_b32 v{r} offset:{off}')

    F, W8, W128, T0, T1 = 46, 50, 52, 54, 56
    E, Q, P = 64, 80, 82
    k('s_mov_b32 m0, s52')
    k('s_cmp_eq_u32 s59, 1')
    k('s_cbranch_scc1 B_r1')
    direct([(E + 2, 1.0, 0), (W128, 128.0, 0)])
    k('v_mov_b32 v84, 0x3f80')
    k('ds_write_addtid_b32 v84')
    cnt[0] = 1
    put(528, E + 2)
    put(8 * 528, W128)
    cmul(k, P, W128, E + 2, T1)
    put(9 * 528, P)
    for r in range(2, 8):
        cmul(k, E + 2 * r, E + 2 * (r - 1), E + 2, T0)
        put(r * 528, E + 2 * r)
        cmul(k, P, W128, E + 2 * r, T1)
        put((8 + r) * 528, P)
    for i in range(2, 8):
        o = 1 if i < 4 else 2
        row0 = 8 * o + ((8 * i) >> o)
        cmul(k, Q, Q if i > 2 else W128, W128, T0)
        put(row0 * 528, Q)
        for idx, r in enumerate(range(0, 8, 1 << o)):
            if r:
                cmul(k, P, Q, E + 2 * r, T1)
                put((row0 + idx) * 528, P)
    for r in range(ne):
        prefetch(r)
    k('s_branch B_tab')
    k('B_r1:')
    direct([(W8, 8.0, 1), (W128, 128.0, 0), (Q, 1024.0, 0)])
    k('v_add_f32 v44, v44, v44')
    k('v_lshlrev_b32 v6, 16, v6')
    k('v_lshlrev_b32 v7, 16, v7')
    k(f'v_pk_mul_f32 {v(F, 2)}, v[6:7], v[44:45] op_sel_hi:[1,0] neg_hi:[1,0]')
    put(32 * 528, Q)
    for i in range(9, 17):
        cmul(k, Q, Q, W128, T0)
        put((24 + i) * 528, Q)
    k('s_mov_b32 m0, s53')
    put(TF, F)
    for j in range(1, 16):
        cmul(k, F, F, W8, T1)
        put(TF + j * 528, F)
    k('B_tab:')
    st()
    k('v_and_b32 v4, 15, v0')
    k('v_bfe_u32 v5, v0, 4, 2')
    k('s_waitcnt lgkmcnt(0)')
    k('s_barrier')
    st()
    FA, EB, AC = 44, 76, 36
    k('s_cmp_ge_u32 s60, 6')
    k('s_cbranch_scc1 B_nokc')
    for s_ in range(8):
        k(f'ds_read_b128 {v(FA + 4 * s_, 4)}, v20 offset:{16 * s_}')
        k(f'ds_read_b128 {v(EB + 4 * s_, 4)}, v21 offset:{16 * s_}')
        if s_ >= 3:
            q = s_ - 3
            k('s_waitcnt lgkmcnt(6)')
            k(f'v_mfma_f32_16x16x32_bf16 {v(AC, 4)}, {v(FA + 4 * q, 4)}, {v(EB + 4 * q, 4)}, {"0" if q == 0 else v(AC, 4)}')
    for q in range(5, 8):
        k(f's_waitcnt lgkmcnt({2 * (7 - q)})')
        k(f'v_mfma_f32_16x16x32_bf16 {v(AC, 4)}, {v(FA + 4 * q, 4)}, {v(EB + 4 * q, 4)}, {v(AC, 4)}')
    k('B_nokc:')
    Z0, Z1, U = 196, 200, 44
    k('s_cmp_eq_u32 s59, 1')
    k('s_cbranch_scc1 B_tw')
    k(f's_waitcnt vmcnt({ne})')
    k('B_tw:')
    k('s_waitcnt vmcnt(4)')
    for e in range(4):
        k(f'v_lshlrev_b32 v{Z0 + e}, 16, v{8 + e}')
        k(f'v_and_b32 v{Z1 + e}, 0xffff0000, v{8 + e}')
    k('s_lshl_b32 s56, s23, 16')
    k('s_and_b32 s58, s23, 0xffff0000')
    k('v_lshlrev_b32 v52, 3, v0')
    k(f'v_add_u32 v52, {UB + 480}, v52')
    for ch, Z in ((0, Z0), (1, Z1)):
        for e in (0, 2):
            k(f'v_pk_fma_f32 {v(U + e, 2)}, {v(Z + e, 2)}, {v(12 + e, 2)}, {v(16 + e, 2)}')
        for e in (0, 2):
            k(f'v_cvt_pk_bf16_f32 v{48 + 2 * ch + e // 2}, v{U + e}, v{U + e + 1}')
            k(f'v_pk_fma_f32 {v(Z + e, 2)}, {v(U + e, 2)}, s[{56 + 2 * ch}:{57 + 2 * ch}], {v(Z + e, 2)} op_sel_hi:[1,0,1]')
        k(f'ds_write_b64 v52, {v(48 + 2 * ch, 2)} offset:{4608 * ch}')
    k('s_cmp_ge_u32 s60, 6')
    k('s_cbranch_scc1 B_nokw')
    k(f'v_cvt_pk_bf16_f32 v40, v{AC}, v{AC + 1}')
    k(f'v_cvt_pk_bf16_f32 v41, v{AC + 2}, v{AC + 3}')
    k('ds_write_b32 v22, v40')
    k('ds_write_b32 v23, v41')
    k('B_nokw:')
    k('s_mul_i32 s63, s59, 8320')
    k(f's_add_u32 s63, s63, {KE}')
    k('v_lshl_add_u32 v11, v33, 4, s63')
    k('v_lshlrev_b32 v204, 4, v0')
    k('s_waitcnt lgkmcnt(0)')
    k('s_barrier')
    st()
    G, O = 44, 56
    for e in range(9):
        k(f'ds_read_u16 v{G + e}, v{24 + e} offset:{KC - 0x8500}')
    k('v_sub_u32 v12, 1807, v4')
    k('v_lshrrev_b32 v12, 1, v12')
    k('v_lshl_add_u32 v12, v5, 2, v12')
    k('v_lshlrev_b32 v12, 2, v12')
    k('v_and_b32 v13, 1, v4')
    k('v_xor_b32 v13, 1, v13')
    k('v_mul_u32_u24 v13, 4160, v13')
    k('s_mul_i32 s63, s61, 8320')
    k('s_lshl_b32 s64, s62, 8')
    k('s_add_u32 s63, s63, s64')
    k(f's_add_u32 s63, s63, {KE - 512}')
    k('v_add3_u32 v12, v12, v13, s63')
    for q in range(1, 4):
        k(f'v_subrev_u32 v{12 + q}, {1024 * q}, v12')
    k('v_lshlrev_b32 v16, 5, v4')
    k('v_lshl_add_u32 v16, v5, 4, v16')
    k('s_mul_i32 s63, s61, 4608')
    k('s_add_u32 s63, s63, s64')
    k(f's_add_u32 s63, s63, {UB}')
    k('v_add_u32 v16, s63, v16')
    k('s_waitcnt lgkmcnt(0)')
    for q in range(4):
        k(f'v_lshl_or_b32 v{O + q}, v{G + 2 * q + 1}, 16, v{G + 2 * q}')
    k(f'ds_write_b128 v11, {v(O, 4)}')
    for q in range(4):
        k(f'v_lshl_or_b32 v{O + 4 + q}, v{G + 2 * q + 2}, 16, v{G + 2 * q + 1}')
    k(f'ds_write_b128 v11, {v(O + 4, 4)} offset:4160')
    k('s_waitcnt lgkmcnt(0)')
    k('s_barrier')
    st()
    zw = [f'ds_write_b128 v204, {v(Z0, 4)} offset:{ZB}', f'ds_write_b128 v204, {v(Z1, 4)} offset:{ZB + 8192}']
    k('s_cmp_ge_u32 s60, 4')
    k('s_cbranch_scc1 B_help')
    ACC = 36
    AF = [68, 132]
    BF = [100, 164]

    def reads(c):
        out = []
        b = c & 1
        for d in range(8):
            off = (128 if d % 2 == 0 else 0) + 16 * c
            r = AF[b] + 4 * d
            out.append(f'ds_read2_b32 {v(r, 2)}, v{12 + d // 2} offset0:{off} offset1:{off + 1}')
            out.append(f'ds_read2_b32 {v(r + 2, 2)}, v{12 + d // 2} offset0:{off + 2} offset1:{off + 3}')
            r = BF[b] + 4 * d
            out.append(f'ds_read_b128 {v(r, 4)}, v16 offset:{512 * d + 64 * c}')
        return out

    started = set()

    def mf(c, d, s_):
        t = d + s_
        b = c & 1
        acc = v(ACC + 4 * t, 4)
        src = acc if t in started else '0'
        started.add(t)
        return f'v_mfma_f32_16x16x32_bf16 {acc}, {v(AF[b] + 4 * d, 4)}, {v(BF[b] + 4 * s_, 4)}, {src}'

    r0 = reads(0)
    order = [[(d, s_) for d in range(lv + 1) for s_ in range(lv + 1) if max(d, s_) == lv and d + s_ < 8] for lv in range(8)]
    for x in r0[:12]:
        k(x)
    pend = r0[12:] + reads(1)
    issued = 12
    for lv in range(8):
        needn = 3 * (lv + 1)
        k(f's_waitcnt lgkmcnt({min(issued - needn, 15)})')
        for i, (d, s_) in enumerate(order[lv]):
            k(mf(0, d, s_))
            if pend and issued - needn < 14:
                k(pend.pop(0))
                issued += 1
    for x in pend:
        k(x)
    tail = ['v_and_b32 v18, 63, v0', 'v_lshlrev_b32 v18, 4, v18', 's_lshl_b32 s63, s60, 12', 'v_add_u32 v19, s63, v18',
            'v_xor_b32 v18, 4096, v19',
            'v_lshlrev_b32 v17, 6, v4', 'v_lshl_add_u32 v17, v5, 4, v17', 'v_add_u32 v17, s63, v17',
            'v_lshrrev_b32 v6, 1, v4', 'v_lshlrev_b32 v6, 15, v6', 'v_and_b32 v7, 1, v4', 'v_lshl_add_u32 v6, v7, 5, v6',
            'v_lshl_add_u32 v6, v5, 3, v6', 's_lshl_b32 s63, s3, 7', 's_lshl_b32 s64, s61, 6', 's_add_u32 s63, s63, s64',
            's_lshl_b32 s64, s62, 20', 's_add_u32 s63, s63, s64']
    for c in range(1, 4):
        k('s_waitcnt lgkmcnt(0)')
        pend = reads(c + 1) if c < 3 else zw + tail
        pairs = [p for lv in range(8) for p in order[lv]]
        for (d, s_) in pairs:
            k(mf(c, d, s_))
            if pend:
                k(pend.pop(0))
    st()
    k('s_cmp_eq_u32 s62, 1')
    k('s_cbranch_scc1 B_x1')
    for t in range(4):
        k(f'ds_write_b128 v19, {v(ACC + 16 + 4 * t, 4)} offset:{RED + 1024 * t}')
    k('s_branch B_x2')
    k('B_x1:')
    for t in range(4):
        k(f'ds_write_b128 v19, {v(ACC + 4 * t, 4)} offset:{RED + 1024 * t}')
    for i in range(0, 16, 2):
        k(f'v_mov_b64 {v(ACC + i, 2)}, {v(ACC + 16 + i, 2)}')
    k('B_x2:')
    k('s_waitcnt lgkmcnt(0)')
    k('s_barrier')
    for t in range(4):
        k(f'ds_read_b128 {v(68 + 8 * t, 4)}, v18 offset:{RED + 1024 * t}')
        k(f'ds_read_b128 {v(72 + 8 * t, 4)}, v17 offset:{ZB + 1024 * t}')
    st()
    for t in range(4):
        k(f's_waitcnt lgkmcnt({6 - 2 * t})')
        for i in (0, 2):
            k(f'v_pk_add_f32 {v(ACC + 4 * t + i, 2)}, {v(ACC + 4 * t + i, 2)}, {v(68 + 8 * t + i, 2)}')
        for i in (0, 2):
            k(f'v_pk_add_f32 {v(ACC + 4 * t + i, 2)}, {v(ACC + 4 * t + i, 2)}, {v(72 + 8 * t + i, 2)}')
        k(f'v_cvt_pk_bf16_f32 v{100 + 2 * t}, v{ACC + 4 * t}, v{ACC + 4 * t + 1}')
        k(f'v_cvt_pk_bf16_f32 v{101 + 2 * t}, v{ACC + 4 * t + 2}, v{ACC + 4 * t + 3}')
        k(f'buffer_store_dwordx2 {v(100 + 2 * t, 2)}, v6, s[48:51], s63 offen {OPT["h_st"]}')
        if t < 3:
            k(f's_add_u32 s63, s63, {8 * 32768}')
    k('s_branch B_end')
    k('B_help:')
    for x in zw:
        k(x)
    nz = 0
    if OPT['hz']:
        srd(k, 36, 18, H_BYTES, WS_H)
        k('v_lshlrev_b32 v40, 4, v33')
        k('s_mul_i32 s31, s2, 22528')
        for i in range(6):
            k(f'buffer_store_dwordx4 v[24:27], v40, s[36:39], s31 offen {OPT["hzfl"]}')
            k(f's_add_u32 s31, s31, {4096 if i < 4 else 2048}')
        nz = 6
    for r in range(ne, nround):
        prefetch(r)
    k(f's_waitcnt vmcnt({nround - ne + nz})')
    S = 12
    for i in range(4):
        for j in range(4):
            src = 108 + 4 * i + j
            if i == 0:
                k(f'v_lshlrev_b32 v{S + 2 * j}, 16, v{src}')
                k(f'v_and_b32 v{S + 1 + 2 * j}, 0xffff0000, v{src}')
            else:
                k(f'v_lshlrev_b32 v20, 16, v{src}')
                k(f'v_and_b32 v21, 0xffff0000, v{src}')
                k(f'v_add_f32 v{S + 2 * j}, v{S + 2 * j}, v20')
                k(f'v_add_f32 v{S + 1 + 2 * j}, v{S + 1 + 2 * j}, v21')
    for e in range(4):
        k(f'v_permlane32_swap_b32 v{S + e}, v{S + 4 + e}')
    for e in range(4):
        k(f'v_add_f32 v{S + e}, v{S + e}, v{S + 4 + e}')
    for e in range(2):
        k(f'v_permlane16_swap_b32 v{S + e}, v{S + 2 + e}')
    for e in range(2):
        k(f'v_add_f32 v{S + e}, v{S + e}, v{S + 2 + e}')
    k(f'v_add_f32_dpp v{S}, v{S}, v{S} row_ror:8 row_mask:0xf bank_mask:0x3')
    k(f'v_add_f32_dpp v{S}, v{S + 1}, v{S + 1} row_ror:8 row_mask:0xf bank_mask:0xc')
    k(f'v_add_f32_dpp v{S}, v{S}, v{S} row_shl:4 row_mask:0xf bank_mask:0x5')
    bf16round(k, 13, 'v12')
    k('v_sub_f32 v14, v12, v13')
    k('v_cvt_pk_bf16_f32 v12, v13, v14')
    k('v_bfe_u32 v5, v0, 3, 2')
    k('v_bfe_u32 v6, v0, 5, 1')
    k('v_lshl_add_u32 v5, v6, 3, v5')
    k('v_and_b32 v6, 1, v0')
    k('v_lshl_add_u32 v5, v6, 2, v5')
    k('v_lshlrev_b32 v5, 4, v5')
    k('v_bfe_u32 v6, v0, 1, 1')
    k('v_lshl_add_u32 v5, v6, 10, v5')
    k('s_lshl_b32 s31, s29, 11')
    k('s_add_u32 s31, s31, s65')
    k('s_lshr_b32 s63, s30, 2')
    k('s_lshl_b32 s63, s63, 9')
    k('s_add_u32 s31, s31, s63')
    k('s_lshl_b32 s63, s35, 2')
    k('s_add_u32 s31, s31, s63')
    k(f's_add_u32 s31, s31, {WS_SFR}')
    k('s_cmp_ge_u32 s2, 172')
    k('s_cselect_b32 s31, 0x7fff0000, s31')
    k('s_mov_b32 exec_lo, 0x0f0f0f0f')
    k('s_mov_b32 exec_hi, 0x0f0f0f0f')
    k('buffer_store_dword v12, v5, s[44:47], s31 offen')
    if v1.DIAG:
        k(f's_memtime s[{v1.SB + 2 * (st.n - 2)}:{v1.SB + 2 * (st.n - 2) + 1}]')
    k('s_waitcnt lgkmcnt(0)')
    k('s_barrier')
    if v1.DIAG:
        k(f's_memtime s[{v1.SB + 2 * (st.n - 1)}:{v1.SB + 2 * (st.n - 1) + 1}]')
    k('B_end:')
    st.finish()
    k('B_exit:')
    k('s_endpgm')
    return fin('conv_kernel', k, 208, 72)


def main(path, ffn):
    launch = (f'; @launch kernel=prep_kernel grid=(256,1,1) block=(256,1,1) lds=1024\n'
              f'; @launch kernel=conv_kernel grid=(256,1,1) block=(512,1,1) lds={B_LDS}\n')
    l2, t2 = ffn()
    txt = HEADER + launch + l2 + '.amdgcn_target "amdgcn-amd-amdhsa--gfx950"\n' + kern_a() + kern_b() + t2 + '.text\ncode_end:\n'
    open(path, 'w').write(txt)


def old_ffn():
    return (f'; @launch kernel=gemm1_kernel grid=(240,1,1) block=(256,1,1) lds={v1.C_LDS}\n'
            f'; @launch kernel=gemm2_kernel grid=(256,1,1) block=(256,1,1) lds={v1.D_LDS}\n'), v1.kern_c() + v1.kern_d()


if __name__ == '__main__':
    if '--diag' in sys.argv:
        v1.DIAG = True
        sys.argv.remove('--diag')
    main(sys.argv[1], old_ffn)
```

```python
import v1, v2
from v2 import *

RG = 40960
GOFF, UOFF = 16384, 28672
F_LDS = 4 * RG
REGION_OF = [3, 2, 0, 1]
SPIN = 0x100000


class VM:
    def __init__(self, k):
        self.k, self.seq = k, []

    def add(self, tag, n=1):
        self.seq += [tag] * n

    def wait(self, tag):
        last = max(i for i, x in enumerate(self.seq) if x == tag)
        n = len(self.seq) - 1 - last
        assert n < 64
        self.k(f's_waitcnt vmcnt({n})')


def kern_f():
    k = Asm()
    k('s_cmp_ge_u32 s2, 256')
    k('s_cbranch_scc1 F_exit')
    st = Stamps(k, 2)
    k(f's_load_dwordx8 s[4:11], s[0:1], {W_G}')
    k(f's_load_dwordx4 s[12:15], s[0:1], {D_DBG}')
    k('s_and_b32 s3, s2, 7')
    k('s_lshr_b32 s16, s2, 3')
    k('s_lshl_b32 s3, s3, 1')
    k('s_and_b32 s17, s16, 1')
    k('s_add_u32 s3, s3, s17')
    k('s_lshr_b32 s16, s16, 1')
    k('v_lshrrev_b32 v1, 6, v0')
    k('v_readfirstlane_b32 s17, v1')
    k('v_and_b32 v1, 63, v0')
    k('v_lshlrev_b32 v2, 4, v1')
    k('s_cmp_ge_u32 s17, 4')
    k('s_cbranch_scc1 F_comp')
    n0 = st.n
    loader(k, st)
    nl = min(st.n, 12)
    st.k = k
    k('F_comp:')
    st.n = n0
    compute(k, st)
    st.n = max(st.n, nl)
    k('F_end:')
    st.finish()
    k('F_exit:')
    k('s_endpgm')
    return fin('ffn_kernel', k, 256, 72)


def loader(k_, st):
    k = k_
    k('s_and_b32 s18, s17, 1')
    k('s_lshr_b32 s19, s17, 1')
    k('s_lshl_b32 s20, s18, 1')
    for j in range(3):
        k(f'v_add_u32 v6, {64 * j}, v1')
        k('v_mul_u32_u24 v7, 5462, v6')
        k('v_lshrrev_b32 v7, 16, v7')
        k('v_mul_u32_u24 v8, 12, v7')
        k('v_sub_u32 v8, v6, v8')
        k('v_xor_b32 v8, s20, v8')
        k('v_mul_u32_u24 v7, 2752, v7')
        k('v_lshl_add_u32 v7, v8, 4, v7')
        k(f'v_subrev_u32 v{3 + j}, {1024 * j}, v7')
    k('s_lshl_b32 s44, s3, 2')
    k('s_add_u32 s44, s44, s17')
    k('s_lshl_b32 s44, s44, 15')
    k(f's_mul_i32 s45, s19, {16 * 2752}')
    k('s_mul_i32 s46, s16, 192')
    k('s_add_u32 s45, s45, s46')
    k('s_lshl_b32 s46, s17, 12')
    k('s_mul_i32 s47, s18, 12288')
    k('s_mul_i32 s48, s19, 3072')
    k('s_add_u32 s47, s47, s48')
    k(f's_add_u32 s47, s47, {GOFF}')
    k('s_waitcnt lgkmcnt(0)')
    srd(k, 20, 14, 0x200000, WS_HT)
    k('s_cmp_eq_u32 s18, 1')
    k('s_cselect_b32 s24, s6, s4')
    k('s_cselect_b32 s25, s7, s5')
    k(f's_mov_b32 s26, {512 * 2752}')
    k('s_mov_b32 s27, 0x20000')
    vm = VM(k)

    def half(hc):
        c, hf = hc >> 1, hc & 1
        stg = (c % 3) * RG
        k(f's_add_u32 m0, s46, {stg}')
        for j in range(2):
            k(f'buffer_load_dwordx4 v2, s[20:23], s44 offen offset:{2048 * hf + 1024 * j} lds')
        k(f's_add_u32 m0, s47, {stg + 6144 * hf}')
        for j in range(3):
            k(f'buffer_load_dwordx4 v{3 + j}, s[24:27], s45 offen offset:{1024 * j} lds')
        k(f's_add_u32 s45, s45, {32 * 2752}')
        if hf:
            k('s_add_u32 s44, s44, 4096')
        vm.add(('h', hc), 5)

    def setup2():
        srd(k, 28, 8, 1376 * 1024)
        srd(k, 32, 10, 2048 * 1024)
        srd(k, 36, 14, H_BYTES, WS_H)
        srd(k, 40, 14, 0x10000)
        k('s_lshr_b32 s49, s16, 1')
        if OPT.get('dtx'):
            k(f's_xor_b32 s49, s49, {OPT["dtx"]}')
        k('s_and_b32 s50, s16, 1')
        k('s_lshl_b32 s51, s3, 1')
        k('s_add_u32 s51, s51, s50')
        k('s_lshl_b32 s52, s51, 1')
        k('s_add_u32 s52, s52, s18')
        k(f's_mul_i32 s53, s19, {43 * 16384}')
        k('s_lshl_b32 s54, s49, 7')
        k('s_add_u32 s53, s53, s54')
        k('s_lshl_b32 s54, s18, 14')
        k('s_add_u32 s54, s54, s53')
        k('s_lshl_b32 s55, s17, 11')
        k('s_lshl_b32 s56, s52, 15')
        k('s_lshl_b32 s57, s49, 12')
        k('s_add_u32 s56, s56, s57')
        k('s_lshl_b32 s57, s19, 11')
        k('s_add_u32 s56, s56, s57')
        k('s_mul_i32 s57, s52, 86')
        k('s_mul_i32 s58, s19, 43')
        k('s_add_u32 s57, s57, s58')
        k('s_lshl_b32 s57, s57, 10')
        k('s_lshl_b32 s58, s52, 15')
        k('s_lshl_b32 s59, s49, 7')
        k('s_add_u32 s58, s58, s59')
        k('s_lshl_b32 s59, s19, 6')
        k('s_add_u32 s58, s58, s59')
        k('s_lshl_b32 s59, s51, 7')
        k('s_mul_i32 s60, s19, 56')
        k('s_add_u32 s59, s59, s60')
        k(f's_add_u32 s59, s59, {WS_FLG}')
        k('v_lshrrev_b32 v6, 3, v1')
        k('v_and_b32 v7, 7, v1')
        k('v_bfe_u32 v8, v1, 4, 1')
        k('v_lshlrev_b32 v9, 2, v8')
        k('v_xor_b32 v7, v7, v9')
        k('v_lshlrev_b32 v6, 10, v6')
        k('v_lshl_add_u32 v6, v7, 4, v6')
        k(f'v_add_u32 v7, {8192 - 1024}, v6')
        k('v_lshrrev_b32 v12, 5, v1')
        k('v_bfe_u32 v13, v1, 2, 2')
        k('v_lshl_add_u32 v9, v12, 3, v13')
        k('v_lshlrev_b32 v10, 7, v9')
        k('v_lshrrev_b32 v9, 1, v13')
        k('v_xor_b32 v9, s19, v9')
        k('v_lshl_add_u32 v10, v9, 6, v10')
        k('v_and_b32 v9, 1, v1')
        k('v_bfe_u32 v11, v1, 1, 1')
        k('v_lshl_add_u32 v11, v8, 1, v11')
        k('v_lshl_add_u32 v9, v9, 2, v11')
        k('v_lshl_add_u32 v10, v9, 3, v10')
        k(f's_add_u32 s60, s55, {3 * RG}')
        k('v_add_u32 v14, s60, v10')
        k('v_xor_b32 v15, 64, v14')
        k('s_lshl_b32 s61, s19, 12')
        k(f's_add_u32 s61, s61, {3 * RG}')
        k('v_add_u32 v10, s61, v10')
        k('v_xor_b32 v11, 64, v10')
        k('v_lshl_add_u32 v9, v12, 4, v13')
        k('v_lshlrev_b32 v9, 6, v9')
        k('v_lshl_add_u32 v9, v8, 5, v9')
        k('v_and_b32 v13, 3, v1')
        k('v_lshl_add_u32 v9, v13, 3, v9')
        k('v_add_u32 v9, s60, v9')
        k('v_and_b32 v13, 31, v1')
        k('v_lshlrev_b32 v13, 10, v13')
        k('v_lshl_add_u32 v12, v12, 5, v13')
        k('v_lshlrev_b32 v13, 2, v1')

    def wd(tag, slot_off, src, step):
        k(f's_add_u32 m0, s55, {slot_off}')
        k(f's_add_u32 s62, s{src}, {step * 16384}')
        k('buffer_load_dwordx4 v6, s[28:31], s62 offen lds')
        k('buffer_load_dwordx4 v7, s[28:31], s62 offen offset:1024 lds')
        vm.add(tag, 2)

    def pre(i):
        wd(('p', i), 3 * RG + 8192 * i, 53, i)

    def res():
        k(f's_add_u32 m0, s55, {3 * RG + 8192 * 3}')
        k('buffer_load_dwordx4 v2, s[20:23], s56 offen lds')
        k('buffer_load_dwordx4 v2, s[20:23], s56 offen offset:1024 lds')
        vm.add(('p', 3), 2)

    def grp(m):
        wd(('g', m), REGION_OF[m // 5] * RG + 8192 * (m % 5), 54, 3 + 2 * m)

    PRE, RES, AF, ACC, HB = 16, 40, [48, 56, 160, 168], 64, 96
    NR = 16

    def take_pre():
        for i in range(3):
            for a_ in range(2):
                for e in range(2):
                    k(f'ds_read_b64_tr_b16 {v(PRE + 8 * i + 4 * a_ + 2 * e, 2)}, v{14 + a_} offset:{8192 * i + 512 * e}')
        for q in range(4):
            k(f'ds_read_b64_tr_b16 {v(RES + 2 * q, 2)}, v9 offset:{8192 * 3 + 256 * q}')
        k('s_waitcnt lgkmcnt(0)')

    k('s_cmp_eq_u32 s16, 15')
    k('s_cbranch_scc1 F_lstat')
    st()
    tmp = Asm()
    kk = k
    k = tmp
    setup2()
    k = kk
    su = tmp.lines
    nsu = len(su) // 6 + 1
    wdq = [lambda: pre(0), lambda: pre(1), lambda: pre(2), res, lambda: grp(4), lambda: grp(5)] + \
          [lambda m=m: grp(m) for m in (6, 7, 8)] + \
          [lambda: grp(9), lambda: grp(10), lambda: grp(11)] + \
          [lambda: (vm.wait(('p', 3)), take_pre())] + [lambda m=m: grp(m) for m in (0, 1, 2, 3, 12, 13, 14, 15, 16, 17, 18, 19)]
    half(0); half(1)
    nxt = 2
    for h in range(16):
        dist = 1 if h == 0 else 2 if h == 1 else OPT.get('dist', 3)
        while nxt <= min(h + dist, 15):
            half(nxt)
            nxt += 1
        if 2 <= h < 8:
            n_ = nsu
            while n_ < len(su) and su[n_].startswith('s_addc'):
                n_ += 1
            for x in su[:n_]:
                k(x)
            su = su[n_:]
        if h == 9 and OPT.get('retouch', 1):
            k('s_getpc_b64 s[64:65]')
            k('F_pc:')
            k('s_lshr_b32 s62, s2, 3')
            k('s_lshl_b32 s62, s62, 2')
            k('s_add_u32 s62, s62, s17')
            k('s_lshl_b32 s62, s62, 7')
            k('s_min_u32 s62, s62, code_end-F_pc-4')
            k('v_mov_b32 v8, s62')
            k('s_mov_b64 exec, 1')
            k('global_load_dword v8, v8, s[64:65]')
            k('s_mov_b64 exec, -1')
            vm.add('t')
        if h + OPT.get('dist', 3) > 15:
            for f in wdq[:3]:
                f()
            wdq = wdq[3:]
        vm.wait(('h', h))
        k('s_barrier')
        if h in (0, 2, 10):
            st()
    for f in wdq[:3]:
        f()
    wdq = wdq[3:]
    k('s_barrier')
    st()
    for f in wdq:
        f()
    k('s_branch F_g2')
    k('F_lstat:')
    setup2()
    k('s_barrier')
    vm.seq = []
    for i in range(3):
        pre(i)
    res()
    for m in range(4, 20):
        grp(m)
    vm.wait(('p', 3))
    take_pre()
    for m in range(4):
        grp(m)
    k('F_g2:')
    st()
    k(f's_mov_b32 s63, {SPIN}')
    k('s_mov_b64 exec, 0x7fff')
    k('F_poll:')
    k(f'buffer_load_dword v8, v13, s[40:43], s59 offen {OPT.get("pfl", "sc1")}')
    k('s_waitcnt vmcnt(0)')
    k('v_cmp_eq_u32 vcc, 0, v8')
    k('s_cbranch_vccz F_got')
    if OPT.get('psleep'):
        k(f's_sleep {OPT["psleep"]}')
    k('s_sub_u32 s63, s63, 1')
    k('s_cbranch_scc0 F_poll')
    k('F_got:')
    k('s_mov_b64 exec, -1')
    st()
    vm.seq = []

    def hload(j):
        out = [f'buffer_load_dwordx4 {v(HB + 4 * (j % NR), 4)}, v2, s[36:39], s57 offen offset:{1024 * (j & 3)} {OPT.get("hfl", "sc1")}']
        if j & 3 == 3:
            out.append('s_add_u32 s57, s57, 4096')
        return out

    cur_region = [3]

    def reads(j):
        m, own = (j - 3) >> 1, (j - 3) & 1
        out = []
        rg = REGION_OF[m // 5]
        if rg != cur_region[0]:
            d = (rg - cur_region[0]) * RG
            for r in (10, 11):
                out.append(f'v_add_u32 v{r}, {hex(d & 0xffffffff)}, v{r}')
            cur_region[0] = rg
        b = AF[j & 3]
        for a_ in range(2):
            for e in range(2):
                out.append(f'ds_read_b64_tr_b16 {v(b + 4 * a_ + 2 * e, 2)}, v{10 + a_} offset:{8192 * (m % 5) + 2048 * own + 512 * e}')
        return out

    AHEAD = OPT.get('ahead', 10)
    for j in range(AHEAD):
        for x in hload(j):
            k(x)
        vm.add(j)
    k('s_barrier')
    RD = 3
    for j in range(43):
        if j in (1, 22):
            st()
        lg = 4 * (min(j + RD - 1, 42) - j)
        last = max(i for i, x in enumerate(vm.seq) if x == j)
        k(f's_waitcnt vmcnt({len(vm.seq) - 1 - last})' + (f' lgkmcnt({lg})' if j >= 3 else ''))
        if j == 24:
            k('s_barrier')
        b = PRE + 8 * j if j < 3 else AF[j & 3]
        f0 = reads(j + RD) if j + RD < 43 else []
        f1 = []
        if j + AHEAD < 43:
            f1 = hload(j + AHEAD)
            vm.add(j + AHEAD)
        f1 = f1[:1] + f0[-1:] + f1[1:]
        f0 = f0[:-1]
        for a_, fill in ((0, f0), (1, f1)):
            acc = v(ACC + 16 * a_, 16)
            k(f'v_mfma_f32_32x32x16_bf16 {acc}, {v(b + 4 * a_, 4)}, {v(HB + 4 * (j % NR), 4)}, {"0" if j == 0 else acc}')
            for x in fill:
                k(x)
    st()
    k('s_lshl_b32 s60, s17, 12')
    k(f's_add_u32 s60, s60, {3 * RG}')
    k('v_add_u32 v14, s60, v2')
    k('s_xor_b32 s60, s17, 2')
    k('s_lshl_b32 s60, s60, 12')
    k(f's_add_u32 s60, s60, {3 * RG}')
    k('v_add_u32 v15, s60, v2')
    for q in range(4):
        k(f'ds_write_b128 v14, {v(ACC + 16 + 4 * q, 4)} offset:{1024 * q}')
    for q in range(8):
        k(f'v_lshlrev_b32 v{PRE + 2 * q}, 16, v{RES + q}')
        k(f'v_and_b32 v{PRE + 2 * q + 1}, 0xffff0000, v{RES + q}')
    for j in range(0, 16, 2):
        k(f'v_pk_add_f32 {v(ACC + j, 2)}, {v(ACC + j, 2)}, {v(PRE + j, 2)}')
    k('s_waitcnt lgkmcnt(0)')
    k('s_barrier')
    for q in range(4):
        k(f'ds_read_b128 {v(HB + 4 * q, 4)}, v15 offset:{1024 * q}')
    for q in range(4):
        k(f's_waitcnt lgkmcnt({3 - q})')
        for j in (0, 2):
            k(f'v_pk_add_f32 {v(ACC + 4 * q + j, 2)}, {v(ACC + 4 * q + j, 2)}, {v(HB + 4 * q + j, 2)}')
        for j in (0, 1):
            k(f'v_cvt_pk_bf16_f32 v{RES + 2 * q + j}, v{ACC + 4 * q + 2 * j}, v{ACC + 4 * q + 2 * j + 1}')
        if q & 1:
            k(f'buffer_store_dwordx4 {v(RES + 2 * q - 2, 4)}, v12, s[32:35], s58 offen offset:{8 * (q - 1)}')
    k('s_branch F_end')


def compute(k, st):
    k('s_setprio 2')
    k('s_bfe_u32 s36, s17, 0x10001')
    k('s_and_b32 s37, s17, 1')
    k('s_getreg_b32 s46, hwreg(HW_REG_XCC_ID, 0, 4)')
    k('s_add_u32 s46, s46, 1')
    k('s_waitcnt lgkmcnt(0)')
    srd(k, 28, 14, 0x40000)
    k('s_lshl_b32 s47, s3, 7')
    k(f's_add_u32 s47, s47, {WS_DIE}')
    k('s_cmp_lg_u32 s17, 4')
    k('s_cbranch_scc1 F_noann')
    k('s_lshl_b32 s44, s16, 2')
    k('s_add_u32 s44, s44, s47')
    k('v_mov_b32 v4, s46')
    k('s_mov_b64 exec, 1')
    k('buffer_store_dword v4, off, s[28:31], s44 sc1')
    k('s_mov_b64 exec, -1')
    k('F_noann:')
    k('s_cmp_eq_u32 s16, 15')
    k('s_cbranch_scc1 F_stat')
    srd(k, 24, 14, H_BYTES, WS_H)
    k('s_mul_i32 s38, s16, 6')
    k('s_mul_i32 s39, s37, 3')
    k('s_add_u32 s38, s38, s39')
    k('s_lshl_b32 s39, s38, 10')
    k(f's_add_u32 s39, s39, {WS_SFR}')
    SF = 20
    k('v_lshrrev_b32 v6, 5, v1')
    k('v_bfe_u32 v7, v1, 2, 2')
    k('v_lshl_add_u32 v6, v6, 3, v7')
    k('v_bfe_u32 v7, v1, 4, 1')
    k('v_and_b32 v8, 3, v1')
    k('v_lshlrev_b32 v9, 6, v6')
    k('v_lshl_add_u32 v9, v7, 5, v9')
    k('v_lshl_add_u32 v9, v8, 3, v9')
    k('v_lshl_add_u32 v10, s36, 13, v9')
    k('v_lshlrev_b32 v9, 1, v8')
    k('v_lshrrev_b32 v8, 1, v8')
    k('v_or_b32 v8, v8, v9')
    k('v_and_b32 v8, 3, v8')
    k('v_mul_u32_u24 v9, 192, v6')
    k('v_lshl_add_u32 v9, v8, 3, v9')
    k(f'v_mul_u32_u24 v8, {UOFF - GOFF}, v7')
    k(f'v_add_u32 v8, {GOFF}, v8')
    k('v_add_u32 v9, v9, v8')
    k('s_mul_i32 s40, s37, 3')
    for u in range(3):
        k(f's_add_u32 s41, s40, {u}')
        k('v_xor_b32 v8, s41, v7')
        k(f'v_lshl_add_u32 v{11 + u}, v8, 5, v9')
    for r in range(4):
        k(f'v_add_u32 v{14 + r}, {2 * RG}, v{10 + r}')
    k('v_and_b32 v18, 31, v1')
    k('v_lshlrev_b32 v18, 2, v18')
    k('v_and_b32 v33, 60, v18')
    k('s_lshl_b32 s40, s3, 1')
    k('s_add_u32 s40, s40, s36')
    k('s_lshl_b32 s48, s40, 8')
    k(f's_add_u32 s48, s48, {WS_ST2}')
    k('s_lshl_b32 s49, s40, 7')
    k('s_lshl_b32 s41, s16, 3')
    k('s_add_u32 s49, s49, s41')
    k('s_lshl_b32 s41, s37, 2')
    k('s_add_u32 s49, s49, s41')
    k(f's_add_u32 s49, s49, {WS_FLG}')
    k('s_mul_i32 s40, s40, 172')
    k('s_add_u32 s40, s40, s38')
    k('s_lshl_b32 s40, s40, 10')
    k(f's_add_u32 s41, s40, {86 * 1024}')
    FR = [36, 56]
    ACC = 76

    def reads(c, ks):
        stg = c % 3
        b = FR[ks & 1]
        base = 14 if stg == 2 else 10
        so = RG if stg == 1 else 0
        out = []
        for nm in ('B0', 'A0', 'B1', 'A1', 'A2'):
            idx = int(nm[1])
            for e in range(2):
                if nm[0] == 'A':
                    out.append(f'ds_read_b64_tr_b16 {v(b + 4 * idx + 2 * e, 2)}, v{base + 1 + idx} offset:{so + ks * 3072 + e * 768}')
                else:
                    out.append(f'ds_read_b64_tr_b16 {v(b + 12 + 4 * idx + 2 * e, 2)}, v{base} offset:{so + idx * 4096 + ks * 1024 + e * 256}')
        return out

    late = ['buffer_load_dword v34, v18, s[28:31], s48 offen sc1', 'buffer_load_dword v35, v18, s[28:31], s48 offen offset:128 sc1',
            'buffer_load_dword v32, v33, s[28:31], s47 offen sc1']
    st()
    k('s_barrier')
    st()
    for x in reads(0, 0):
        k(x)
    for c in range(8):
        for ks in range(4):
            b = FR[ks & 1]
            k('s_waitcnt lgkmcnt(0)')
            if ks & 1:
                k('s_barrier')
                if ks == 3 and c in (0, 4, 7):
                    st()
            fill = reads(c, ks + 1) if ks < 3 else (reads(c + 1, 0) if c < 7 else [])
            for u in range(3):
                for i in range(2):
                    acc = v(ACC + 16 * (2 * u + i), 16)
                    src = '0' if (c == 0 and ks == 0) else acc
                    k(f'v_mfma_f32_32x32x16_bf16 {acc}, {v(b + 4 * u, 4)}, {v(b + 12 + 4 * i, 4)}, {src}')
                    for x in fill[:3]:
                        k(x)
                    fill = fill[3:]
                    if c == 6 and ks > 0 and u == 2 and i == 0:
                        k(f'buffer_load_dwordx4 {v(SF + 4 * (ks - 1), 4)}, v2, s[28:31], s39 offen offset:{1024 * (ks - 1)}')
                    if c == 7 and ks == 0 and u == 2:
                        k(late[i])
                    if c == 7 and ks == 1 and u == 2 and i == 0:
                        k(late[2])
    MB, SG, CR = 36, 44, 48
    k(f's_mov_b32 s50, {SPIN}')
    k('s_mov_b32 s43, 0x01000100')
    k('F_spoll:')
    k('s_waitcnt vmcnt(0)')
    k('v_min_u32 v19, v34, v35')
    k('v_cmp_eq_u32 vcc, 0, v19')
    k('s_cbranch_vccz F_sgot')
    k(late[0])
    k(late[1])
    k('s_sub_u32 s50, s50, 1')
    k('s_cbranch_scc0 F_spoll')
    k('s_waitcnt vmcnt(0)')
    k('F_sgot:')
    for i in range(2):
        for j in range(4):
            k(f'v_perm_b32 v{MB + 4 * i + j}, v{34 + i}, v{34 + i}, s43')
    for u in range(3):
        for i in range(2):
            acc = v(ACC + 16 * (2 * u + i), 16)
            k(f'v_mfma_f32_32x32x16_bf16 {acc}, {v(SF + 4 * u, 4)}, {v(MB + 4 * i, 4)}, {acc}')
            if u == 0:
                k(f'v_and_b32 v{SG + 2 * i}, 0xffff0000, v{34 + i}')
                k(f'v_rcp_f32 v{CR + 2 * i}, v{SG + 2 * i}')
                k(f'v_mul_f32 v{CR + 2 * i}, {hex(LOG2E | 0x80000000)}, v{CR + 2 * i}')
    k('v_cmp_ne_u32 s[44:45], s46, v32')
    st()
    for u in range(3):
        k(f's_add_u32 s42, s38, {u}')
        k('s_cmp_ge_u32 s42, 86')
        k('s_cbranch_scc1 F_pub')
        for i in range(2):
            b = ACC + 16 * (2 * u + i)
            for j in range(0, 8, 2):
                k(f'v_pk_mul_f32 {v(b + j, 2)}, {v(b + j, 2)}, {v(CR + 2 * i, 2)} op_sel_hi:[1,0]')
            for j in range(8):
                k(f'v_exp_f32 v{b + j}, v{b + j}')
            for j in range(0, 8, 2):
                k(f'v_pk_fma_f32 {v(b + j, 2)}, {v(b + j, 2)}, {v(SG + 2 * i, 2)}, {v(SG + 2 * i, 2)} op_sel_hi:[1,0,0]')
            for j in range(8):
                k(f'v_rcp_f32 v{b + j}, v{b + j}')
            for j in range(0, 8, 2):
                k(f'v_pk_mul_f32 {v(b + j, 2)}, {v(b + j, 2)}, {v(b + 8 + j, 2)}')
            for j in range(4):
                k(f'v_cvt_pk_bf16_f32 v{b + 8 + j}, v{b + 2 * j}, v{b + 2 * j + 1}')
            k(f'buffer_store_dwordx4 {v(b + 8, 4)}, v2, s[24:27], s{40 + i} offen offset:{1024 * u} {OPT.get("hst", "")}')
    k('F_pub:')
    st()
    k('v_mov_b32 v4, 1')
    k('s_mov_b64 exec, 1')
    k('s_cmp_eq_u64 s[44:45], 0')
    k('s_waitcnt vmcnt(0)')
    k('s_cbranch_scc1 F_near')
    k('buffer_wbl2 sc1')
    k('s_waitcnt vmcnt(0)')
    k('buffer_store_dword v4, off, s[28:31], s49 sc1')
    k('s_branch F_end')
    k('F_near:')
    k('buffer_store_dword v4, off, s[28:31], s49')
    k('s_branch F_end')
    k('F_stat:')
    srd(k, 20, 14, 0x200000, WS_HT)
    k('s_lshl_b32 s40, s3, 2')
    k('s_and_b32 s41, s17, 3')
    k('s_add_u32 s40, s40, s41')
    k('s_lshl_b32 s41, s40, 15')
    L, S, Q, T = 40, 8, 16, 24
    for j in range(32):
        k(f'buffer_load_dwordx4 {v(L + 4 * j, 4)}, v2, s[20:23], s41 offen offset:{1024 * (j & 3)}')
        if j & 3 == 3:
            k('s_add_u32 s41, s41, 4096')
    k('s_barrier')
    for i in range(16):
        k(f'v_mov_b32 v{S + i}, 0')
    for j in range(32):
        k(f's_waitcnt vmcnt({31 - j})')
        for i in range(4):
            k(f'v_lshlrev_b32 v{T + 2 * i}, 16, v{L + 4 * j + i}')
            k(f'v_and_b32 v{T + 2 * i + 1}, 0xffff0000, v{L + 4 * j + i}')
        for i in range(0, 8, 2):
            k(f'v_pk_add_f32 {v(S + i, 2)}, {v(S + i, 2)}, {v(T + i, 2)}')
            k(f'v_pk_fma_f32 {v(Q + i, 2)}, {v(T + i, 2)}, {v(T + i, 2)}, {v(Q + i, 2)}')
    for e in range(8):
        k(f'v_permlane32_swap_b32 v{S + e}, v{Q + e}')
    for e in range(8):
        k(f'v_add_f32 v{S + e}, v{S + e}, v{Q + e}')
    for e in range(4):
        k(f'v_permlane16_swap_b32 v{S + e}, v{S + 4 + e}')
    for e in range(4):
        k(f'v_add_f32 v{S + e}, v{S + e}, v{S + 4 + e}')
    for e in range(2):
        k(f'v_add_f32_dpp v{S + e}, v{S + e}, v{S + e} row_ror:8 row_mask:0xf bank_mask:0x3')
    for e in range(2):
        k(f'v_add_f32_dpp v{S + e}, v{S + 2 + e}, v{S + 2 + e} row_ror:8 row_mask:0xf bank_mask:0xc')
    k(f'v_add_f32_dpp v{S}, v{S}, v{S} row_shl:4 row_mask:0xf bank_mask:0x5')
    k(f'v_add_f32_dpp v{S}, v{S + 1}, v{S + 1} row_shr:4 row_mask:0xf bank_mask:0xa')
    k(f'v_mul_f32 v16, 0x3b000000, v{S}')
    k('v_mov_b32 v17, v16')
    k('v_permlane32_swap_b32 v16, v17')
    k('v_fma_f32 v17, -v16, v16, v17')
    k('v_max_f32 v17, 0, v17')
    bf16round(k, 17, 'v17')
    k('v_add_f32 v17, 0x3727c5ac, v17')
    bf16round(k, 17, 'v17')
    k('v_sqrt_f32 v17, v17')
    k('v_and_b32 v5, 3, v1')
    k('v_and_b32 v6, 28, v1')
    k('v_lshl_add_u32 v5, v5, 5, v6')
    k('v_cvt_pk_bf16_f32 v16, -v16, v17')
    k('s_lshl_b32 s40, s40, 7')
    k(f's_add_u32 s40, s40, {WS_ST2}')
    k('s_mov_b32 exec_hi, 0')
    k('buffer_store_dword v16, v5, s[28:31], s40 offen sc1')


def new_ffn():
    return f'; @launch kernel=ffn_kernel grid=(256,1,1) block=(512,1,1) lds={F_LDS}\n', kern_f()


if __name__ == '__main__':
    if '--diag' in sys.argv:
        v1.DIAG = True
        sys.argv.remove('--diag')
    main(sys.argv[1], new_ffn)
```
